```python
import torch

def _softmax(x, axis=-1):
    return torch.softmax(x, dim=axis)
def _gelu(x):
    return torch.nn.functional.gelu(x, approximate="tanh")
def _silu(x):
    return torch.nn.functional.silu(x)
def _sigmoid(x):
    return torch.sigmoid(x)
def _layernorm(x, axis=-1, eps=1e-5):
    m = x.mean(dim=axis, keepdim=True)
    v = x.var(dim=axis, keepdim=True, unbiased=False)
    return (x - m) / torch.sqrt(v + eps)
def _scatter_add(tgt, idx, src, axis=0):
    return tgt.clone().index_add_(axis, idx, src)
def _segment_sum(src, seg, n):
    out = torch.zeros((n,) + src.shape[1:], dtype=src.dtype)
    return out.index_add_(0, seg, src)
def _pad(x, pw):
    flat = tuple(v for pair in reversed(pw) for v in pair)
    return torch.nn.functional.pad(x, flat)

kernel_name = 'parallel_sum__ssm_conv_s5__swiglu_ffn__prompt'

def setup_inputs():

    _w = (lambda a: (lambda t: t.to(torch.bfloat16) if t.is_floating_point() else t)(torch.as_tensor(a)))
    def _A_setup():
        B, S, D = 1, 2048, 576
        P = D
        Lambda_re = -0.5 * (lambda _x: torch.exp(torch.as_tensor(_x)))((lambda *s: torch.randn(*s, dtype=torch.bfloat16) * 0.8)(P))
        Lambda_im = (lambda *s: torch.randn(*s, dtype=torch.bfloat16) * 0.8)(P) * 1.0
        B_re = (lambda *s: torch.randn(*s, dtype=torch.bfloat16) * 0.8)(P, D) * (D ** -0.5)
        B_im = (lambda *s: torch.randn(*s, dtype=torch.bfloat16) * 0.8)(P, D) * (D ** -0.5)
        C_re = (lambda *s: torch.randn(*s, dtype=torch.bfloat16) * 0.8)(D, P) * (P ** -0.5)
        C_im = (lambda *s: torch.randn(*s, dtype=torch.bfloat16) * 0.8)(D, P) * (P ** -0.5)
        log_dt = (lambda *s: torch.randn(*s, dtype=torch.bfloat16) * 0.8)(P) * 0.3 - 2.0
        Dskip = (lambda *s: torch.randn(*s, dtype=torch.bfloat16) * 0.8)(D)
        return {
            "x": _w((lambda *s: torch.randn(*s, dtype=torch.bfloat16) * 0.05)(B, S, D)),
            "Lambda_re": _w(Lambda_re),
            "Lambda_im": _w(Lambda_im),
            "B_re": _w(B_re),
            "B_im": _w(B_im),
            "C_re": _w(C_re),
            "C_im": _w(C_im),
            "log_dt": _w(log_dt),
            "Dskip": _w(Dskip),
        }
    _A_in = _A_setup()

    def _B_setup():
        B, S, D, F = 1, 2048, 576, 4608
        return {
            "x": _w((lambda *s: torch.randn(*s, dtype=torch.bfloat16) * 0.05)(B, S, D)),
            "w_gate": _w((lambda *s: torch.randn(*s, dtype=torch.bfloat16) * 0.05)(D, F)),
            "w_up": _w((lambda *s: torch.randn(*s, dtype=torch.bfloat16) * 0.05)(D, F)),
            "w_down": _w((lambda *s: torch.randn(*s, dtype=torch.bfloat16) * 0.05)(F, D)),
        }
    _B_in = _B_setup()

    return {
        "A_x": _A_in["x"],
        "A_Lambda_re": _A_in["Lambda_re"],
        "A_Lambda_im": _A_in["Lambda_im"],
        "A_B_re": _A_in["B_re"],
        "A_B_im": _A_in["B_im"],
        "A_C_re": _A_in["C_re"],
        "A_C_im": _A_in["C_im"],
        "A_log_dt": _A_in["log_dt"],
        "A_Dskip": _A_in["Dskip"],
        "B_x": _B_in["x"],
        "B_w_gate": _B_in["w_gate"],
        "B_w_up": _B_in["w_up"],
        "B_w_down": _B_in["w_down"],
    }

def reference(A_x, A_Lambda_re, A_Lambda_im, A_B_re, A_B_im, A_C_re, A_C_im, A_log_dt, A_Dskip, B_x, B_w_gate, B_w_up, B_w_down):
    def _A_ref(x, Lambda_re, Lambda_im, B_re, B_im, C_re, C_im, log_dt, Dskip):
        Bsz, L, H = x.shape
        Lam = Lambda_re + 1j * Lambda_im
        Bmat = B_re + 1j * B_im
        Cmat = C_re + 1j * C_im
        dt = torch.exp(log_dt)
        Lam_bar = torch.exp(dt * Lam)
        B_bar = ((Lam_bar - 1.0) / Lam)[:, None] * Bmat
        Bu = torch.einsum("bld,pd->blp", x + 0j, B_bar)
        h = torch.zeros_like(Bu[:, 0, :])
        hs = []
        for t in range(L):
            h = Lam_bar[None, :] * h + Bu[:, t, :]
            hs.append(h)
        hseq = torch.stack(hs, 1)
        y = 2.0 * torch.einsum("blp,dp->bld", hseq, Cmat).real + x * Dskip[None, None, :]
        return y

    def _B_ref(x, w_gate, w_up, w_down):
        g = _silu(x @ w_gate)
        u = x @ w_up
        return (g * u) @ w_down

    x = A_x
    xn = _layernorm(x, axis=-1)
    return x + _A_ref(xn, A_Lambda_re, A_Lambda_im, A_B_re, A_B_im, A_C_re, A_C_im, A_log_dt, A_Dskip) + _B_ref(xn, B_w_gate, B_w_up, B_w_down)
```

```python
import struct, sys, os
ABL = set(os.environ.get('ABL','').split(','))
exec(open('layout.py').read())
NAME = "parallel_sum__ssm_conv_s5__swiglu_ffn__prompt"
M32 = 'm16' not in ABL
MERGE = 'merge' in ABL
LOG2E = 1.4426950408889634

def f32(x):
    return "0x%08x" % struct.unpack("<I", struct.pack("<f", x))[0]

class Asm:
    def __init__(self):
        self.L = []; self.sc1 = True
    def e(self, s):
        if s.startswith("buffer_store") and 'nosc1' not in ABL and self.sc1: s += " sc1"
        self.L.append("    " + s)
    def c(self, s):
        self.L.append("    ; " + s)
    def lab(self, s):
        self.L.append(s + ":")
    def raw(self, s):
        self.L.append(s)

def vr(b, n=1):
    return f"v{b}" if n == 1 else f"v[{b}:{b+n-1}]"

class Cnt:
    def __init__(self, name, maxv):
        self.q = []; self.name = name; self.maxv = maxv
    def issue(self, tag):
        self.q.append(tag)
    def need(self, tags):
        last = -1
        for i, t in enumerate(self.q):
            if t in tags: last = i
        if last < 0: return None
        n = len(self.q) - 1 - last
        n = min(n, self.maxv)
        self.q = self.q[len(self.q) - n:] if n > 0 else []
        return n

def srd(a, d, lo, hi, size):
    a.e(f"s_mov_b32 s{d}, s{lo}")
    a.e(f"s_mov_b32 s{d+1}, s{hi}")
    a.e(f"s_mov_b32 s{d+2}, {size}")
    a.e(f"s_mov_b32 s{d+3}, 0x00020000")
def srd_ws(a, d, wslo, off, size):
    a.e(f"s_add_u32 s{d}, s{wslo}, {off}")
    a.e(f"s_addc_u32 s{d+1}, s{wslo+1}, 0")
    a.e(f"s_mov_b32 s{d+2}, {size}")
    a.e(f"s_mov_b32 s{d+3}, 0x00020000")

def kernel_head(a, name):
    a.raw(f".globl {name}")
    a.raw(".p2align 8")
    a.raw(f".type {name},@function")
    a.lab(name)

def kd(name, nv, ns=96):
    acc = (nv + 3) // 4 * 4
    return f""".p2align 6
.amdhsa_kernel {name}
  .amdhsa_next_free_vgpr {nv}
  .amdhsa_next_free_sgpr {ns}
  .amdhsa_accum_offset {acc}
  .amdhsa_group_segment_fixed_size 0
  .amdhsa_kernarg_size 128
  .amdhsa_user_sgpr_count 2
  .amdhsa_user_sgpr_kernarg_segment_ptr 1
  .amdhsa_system_sgpr_workgroup_id_x 1
  .amdhsa_float_denorm_mode_32 3
.end_amdhsa_kernel
"""

class Stamper:
    def __init__(self, a, key, first=60, wsreg=30, wavereg=32):
        self.a = a; self.on = key in ABL; self.n = 0; self.first = first; self.ws = wsreg; self.wave = wavereg
    def __call__(self, lg=None):
        if not self.on: return
        a = self.a
        if self.n == 0:
            a.e("s_memrealtime s[100:101]")
            a.e("s_waitcnt lgkmcnt(0)")
            a.e("s_mov_b32 s3, s100")
        a.e("s_memtime s[100:101]")
        a.e("s_waitcnt lgkmcnt(0)")
        a.e(f"s_mov_b32 s{self.first+self.n}, s100")
        self.n += 1
        if lg is not None: lg.q = []
    def dump(self):
        if not self.on: return
        a = self.a
        a.e("s_waitcnt vmcnt(0)")
        self()
        a.e("s_memrealtime s[100:101]")
        a.e("s_waitcnt lgkmcnt(0)")
        a.e("s_sub_u32 s3, s100, s3")
        srd_ws(a, 8, self.ws, 0x8000000, 1 << 22)
        a.e("s_lshl_b32 s100, s2, 3")
        a.e(f"s_add_u32 s100, s100, s{self.wave}")
        a.e("s_lshl_b32 s100, s100, 8")
        a.e("v_mov_b32 v11, 0")
        a.e(f"v_mov_b32 v10, {self.n}")
        a.e(f"buffer_store_dword v10, v11, s[8:11], s100 offen")
        a.e("v_mov_b32 v10, s3")
        a.e("buffer_store_dword v10, v11, s[8:11], s100 offen offset:252")
        for i in range(self.n):
            a.e(f"v_mov_b32 v10, s{self.first+i}")
            a.e(f"buffer_store_dword v10, v11, s[8:11], s100 offen offset:{4*i+4}")
```

```python
from common import *

K2_R = 4
K2_STAGE = 18432
K2_NSCAN = 144
def launches():
    return [("k2_kernel", 256 + K2_NSCAN, 256, K2_R * K2_STAGE), ("k3_kernel", 256, 256, 73728)]

def cmul(a, dr, di, ar, ai, br, bi, t):
    a.e(f"v_mul_f32 v{t}, v{ai}, v{bi}")
    a.e(f"v_mul_f32 v{t+1}, v{ar}, v{bi}")
    a.e(f"v_fma_f32 v{t}, v{ar}, v{br}, -v{t}")
    a.e(f"v_fma_f32 v{di}, v{ai}, v{br}, v{t+1}")
    a.e(f"v_mov_b32 v{dr}, v{t}")

def gen_k2(a):
    R = K2_R
    kernel_head(a, "k2_kernel")
    st = Stamper(a, 'stamp2', first=62)
    a.e(f"s_cmp_ge_u32 s2, {256+K2_NSCAN}")
    a.e("s_cbranch_scc1 K2_END")
    st()
    a.e("s_load_dwordx2 s[4:5], s[0:1], 96")
    a.e("s_load_dwordx2 s[30:31], s[0:1], 120")
    a.e("s_load_dwordx4 s[52:55], s[0:1], 8")
    a.e("s_load_dwordx2 s[56:57], s[0:1], 56")
    a.e("v_lshrrev_b32 v12, 6, v0")
    a.e("s_nop 0")
    a.e("v_readfirstlane_b32 s32, v12")
    if 'scanlast' in ABL:
        a.e("s_cmp_ge_u32 s2, 256")
        a.e("s_cbranch_scc1 K2_SCAN")
    else:
        a.e(f"s_cmp_lt_u32 s2, {K2_NSCAN}")
        a.e("s_cbranch_scc1 K2_SCAN")
        a.e(f"s_sub_u32 s2, s2, {K2_NSCAN}")
    acc = lambda rt, j: 184 + (rt * 9 + j) * 4
    wF = lambda b, j: 112 + (b * 9 + j) * 4
    HD = 8
    hF = lambda slot, rt: 48 + (slot * 2 + rt) * 4
    vLds = [1, 2]; vDma = [3, 4, 5, 6, 7]; vL16 = 8
    a.e("s_and_b32 s33, s2, 7")
    a.e("s_lshr_b32 s34, s2, 3")
    a.e("s_lshr_b32 s35, s33, 1")
    a.e("s_and_b32 s36, s33, 1")
    a.e("s_lshl_b32 s36, s36, 3")
    a.e("s_lshr_b32 s37, s34, 2")
    a.e("s_add_u32 s36, s36, s37")
    a.e("s_and_b32 s37, s34, 3")
    a.e("s_waitcnt lgkmcnt(0)")
    srd(a, 12, 4, 5, 4608 * 1152)
    srd_ws(a, 8, 30, OFF_H, 2048 * 9216)
    srd_ws(a, 16, 30, OFF_PART, 4 * 2048 * 2304)
    a.e("v_and_b32 v12, 63, v0")
    a.e("v_lshrrev_b32 v13, 4, v12")
    a.e(f"v_lshlrev_b32 v{vL16}, 4, v12")
    a.e("s_lshl_b32 s39, s36, 3")
    a.e("s_lshl_b32 s40, s32, 1")
    a.e("s_add_u32 s39, s39, s40")
    a.e("s_mul_i32 s41, s39, 144")
    a.e("s_mul_i32 s42, s35, 36")
    a.e("s_add_u32 s41, s41, s42")
    a.e("s_lshl_b32 s41, s41, 10")
    a.e("s_lshl_b32 s43, s35, 7")
    a.e("s_add_u32 s43, s43, s39")
    a.e("s_mul_i32 s43, s43, 36")
    a.e("s_mul_i32 s44, s37, 9")
    a.e("s_add_u32 s43, s43, s44")
    a.e("s_lshl_b32 s43, s43, 10")
    a.e("v_lshrrev_b32 v16, 1, v13")
    a.e("v_and_b32 v17, 1, v13")
    a.e("v_lshlrev_b32 v16, 4, v16")
    a.e("v_lshl_add_u32 v16, v17, 2, v16")
    a.e("v_bfe_u32 v17, v12, 2, 2")
    a.e("v_add_u32 v16, v16, v17")
    a.e("v_mul_u32_u24 v16, 288, v16")
    a.e("v_and_b32 v17, 3, v12")
    a.e(f"v_lshl_add_u32 v{vLds[0]}, v17, 3, v16")
    a.e(f"v_add_u32 v{vLds[1]}, {2*K2_STAGE}, v{vLds[0]}")
    a.e("s_mul_i32 s46, s32, 288")
    a.e("s_movk_i32 s45, 3641")
    for i in range(5):
        a.e(f"v_add_u32 v16, s46, v12")
        if i: a.e(f"v_add_u32 v16, {64*i}, v16")
        a.e("v_mul_lo_u32 v17, v16, s45")
        a.e("v_lshrrev_b32 v17, 16, v17")
        a.e("v_mul_u32_u24 v18, 18, v17")
        a.e("v_sub_u32 v18, v16, v18")
        a.e("v_and_b32 v19, 0x33, v17")
        a.e("v_bfe_u32 v20, v17, 2, 1")
        a.e("v_lshl_add_u32 v19, v20, 3, v19")
        a.e("v_bfe_u32 v20, v17, 3, 1")
        a.e("v_lshl_add_u32 v19, v20, 2, v19")
        a.e("v_mul_u32_u24 v19, 0x480, v19")
        a.e(f"v_lshl_add_u32 v{vDma[i]}, v18, 4, v19")
    a.e("s_mul_i32 s47, s32, 4608")
    a.e(f"s_mul_i32 s48, s35, {1152*1152}")
    a.e("s_mul_i32 s49, s37, 288")
    a.e("s_add_u32 s48, s48, s49")
    vm = Cnt("vm", 63); lg = Cnt("lgkm", 15)
    NST = 18
    a.e("s_lshr_b32 s58, s34, 2")
    a.e("s_lshl_b32 s58, s58, 1")
    a.e("s_mul_i32 s59, s37, 5")
    a.e("s_add_u32 s58, s58, s59")
    a.e("s_cmp_ge_u32 s58, 18")
    a.e("s_cselect_b32 s59, 18, 0")
    a.e("s_sub_u32 s58, s58, s59")
    if 'norot' in ABL: a.e("s_mov_b32 s58, 0")
    def rotS(S, dst):
        a.e(f"s_add_u32 s{dst}, s58, {S}")
        a.e(f"s_cmp_ge_u32 s{dst}, 18")
        a.e(f"s_cselect_b32 s59, 18, 0")
        a.e(f"s_sub_u32 s{dst}, s{dst}, s59")
    def rotL(S, dst):
        return [f"s_add_u32 s{dst}, s58, {S}", f"s_cmp_ge_u32 s{dst}, 18", f"s_cselect_b32 s59, 18, 0", f"s_sub_u32 s{dst}, s{dst}, s59"]
    def dma_ops(S):
        ops = []
        for i in range(5):
            L = []
            if i == 0:
                L += rotL(S, 57) + [f"s_mul_i32 s57, s57, {64*1152}", "s_add_u32 s49, s48, s57"]
            if i == 4: L.append("s_mov_b32 exec_hi, 0")
            L += [f"s_add_u32 m0, s47, {(S % R)*K2_STAGE + i*1024}", "s_nop 0",
                  f"buffer_load_dwordx4 v{vDma[i]}, s[12:15], s49 offen lds"]
            if i == 4: L.append("s_mov_b32 exec_hi, -1")
            ops.append((("D", S), L))
        return ops
    def hload_ops(kk):
        ops = []
        for rt in range(2):
            L = []
            if rt == 0:
                L += rotL(kk // 2, 56) + ["s_lshl_b32 s56, s56, 11", "s_add_u32 s56, s56, s41"]
            L += [f"s_add_u32 s50, s56, {(rt*144+(kk&1))*1024}",
                  f"buffer_load_dwordx4 {vr(hF(kk % HD, rt),4)}, v{vL16}, s[8:11], s50 offen"]
            ops.append((("H", kk), L))
        return ops
    def emit_op(op):
        for x in op[1]: a.e(x)
        vm.issue(op[0])
    for op in dma_ops(0) + hload_ops(0) + hload_ops(1) + dma_ops(1) + hload_ops(2) + hload_ops(3): emit_op(op)
    next_dma = 2; next_h = 4
    def rd(kk, j):
        S, half = divmod(kk, 2)
        base = (S % R) * K2_STAGE + half * 32 * 288 + j * 32
        vb = vLds[0]
        if (S % R) >= 2:
            base -= 2 * K2_STAGE; vb = vLds[1]
        w = wF(kk & 1, j)
        a.e(f"ds_read_b64_tr_b16 {vr(w,2)}, v{vb} offset:{base}")
        a.e(f"ds_read_b64_tr_b16 {vr(w+2,2)}, v{vb} offset:{base+8*288}")
        lg.issue((kk, j)); lg.issue((kk, j))
    NK = 36
    for kk in range(NK):
        S, half = divmod(kk, 2)
        if half == 0:
            st(lg)
            n = vm.need({("D", S), ("D", S + 1)})
            if n is not None: a.e(f"s_waitcnt vmcnt({n})")
            a.e("s_barrier")
            if kk == 0:
                for j in range(9): rd(0, j)
        vq = []
        nh = 0
        while next_h < NK and next_h <= kk - 1 + HD and nh < 2:
            vq += hload_ops(next_h); next_h += 1; nh += 1
        if next_dma < NST and next_dma <= S + R - 1 and (half == 0 or S == 0):
            vq = dma_ops(next_dma) + vq; next_dma += 1
        slots = {}
        for q in range(len(vq)):
            slots.setdefault(1 + (q * 16) // len(vq), []).append(vq[q])
        vsched = sorted(slots.items())
        n = vm.need({("H", kk)})
        if n is not None: a.e(f"s_waitcnt vmcnt({n})")
        mf = 0
        for j in range(9):
            if kk + 1 < NK: rd(kk + 1, j)
            n = lg.need({(kk, j)})
            if n is not None: a.e(f"s_waitcnt lgkmcnt({n})")
            for rt in range(2):
                c = "0" if kk == 0 else vr(acc(rt, j), 4)
                a.e(f"v_mfma_f32_16x16x32_bf16 {vr(acc(rt,j),4)}, {vr(wF(kk&1,j),4)}, {vr(hF(kk%HD,rt),4)}, {c}")
                mf += 1
                while vsched and vsched[0][0] <= mf:
                    for op in vsched.pop(0)[1]: emit_op(op)
        assert not vsched
    st(lg)
    a.e("s_nop 7")
    a.e("s_nop 1")
    for rt in range(2):
        for j in range(9):
            a.e(f"s_add_u32 s50, s43, {(rt*36+j)*1024}")
            a.e(f"buffer_store_dwordx4 {vr(acc(rt,j),4)}, v{vL16}, s[16:19], s50 offen")
    st.dump()
    a.e("s_endpgm")

    a.lab("K2_SCAN")
    a.e("s_waitcnt lgkmcnt(0)")
    srd_ws(a, 8, 30, OFF_U, 2048 * 4608)
    srd_ws(a, 12, 30, OFF_HS, 2048 * 2304)
    srd(a, 16, 52, 53, 1152)
    srd(a, 20, 54, 55, 1152)
    srd(a, 24, 56, 57, 1152)
    a.e("s_lshr_b32 s33, s2, 1")
    a.e("s_and_b32 s39, s2, 1")
    if 'prio' in ABL: a.e("s_setprio 3")
    a.e("v_and_b32 v1, 63, v0")
    a.e("v_bfe_u32 v2, v1, 4, 1")
    a.e("v_and_b32 v3, 15, v1")
    a.e("v_lshrrev_b32 v19, 5, v1")
    a.e("s_lshl_b32 s34, s2, 3")
    a.e("v_lshl_add_u32 v4, v2, 2, s34")
    a.e("buffer_load_dword v5, v4, s[16:19], 0 offen")
    a.e("buffer_load_dword v6, v4, s[20:23], 0 offen")
    a.e("buffer_load_dword v7, v4, s[24:27], 0 offen")
    a.e("s_lshl_b32 s35, s39, 9")
    a.e(f"s_mov_b32 s36, {16*73728}")
    a.e("v_mul_lo_u32 v8, v19, s36")
    a.e("v_lshl_add_u32 v8, v3, 4, v8")
    a.e("v_lshl_add_u32 v8, v2, 8, v8")
    a.e("v_add_u32 v8, s35, v8")
    a.e("s_mul_i32 s34, s32, 32*72")
    a.e("s_add_u32 s34, s34, s33")
    a.e("s_lshl_b32 s34, s34, 10")
    NS = 16
    for s in range(NS):
        a.e(f"buffer_load_dwordx4 {vr(128+4*s,4)}, v8, s[8:11], s34 offen")
        a.e(f"s_add_u32 s34, s34, {72*1024}")
    a.e("s_and_b32 s35, s2, 3")
    a.e("s_lshl_b32 s35, s35, 8")
    a.e(f"s_mov_b32 s36, {16*36864}")
    a.e("v_mul_lo_u32 v9, v19, s36")
    a.e("v_lshl_add_u32 v9, v3, 4, v9")
    a.e("v_lshl_add_u32 v9, v2, 3, v9")
    a.e("v_add_u32 v9, s35, v9")
    a.e("s_mul_i32 s35, s32, 32*36")
    a.e("s_lshr_b32 s36, s33, 1")
    a.e("s_add_u32 s35, s35, s36")
    a.e("s_lshl_b32 s35, s35, 10")
    a.e("s_mov_b32 s37, 0xffff0000")
    a.e(f"s_waitcnt vmcnt({NS})")
    for c in range(2):
        b = 20 + 8 * c
        if c == 0:
            a.e("v_lshlrev_b32 v11, 16, v5"); a.e("v_lshlrev_b32 v12, 16, v6"); a.e("v_lshlrev_b32 v13, 16, v7")
        else:
            a.e("v_and_b32 v11, s37, v5"); a.e("v_and_b32 v12, s37, v6"); a.e("v_and_b32 v13, s37, v7")
        a.e(f"v_mul_f32 v13, {f32(LOG2E)}, v13")
        a.e("v_exp_f32 v13, v13")
        a.e("s_nop 0")
        a.e("v_cvt_pk_bf16_f32 v13, v13, v13")
        a.e("v_lshlrev_b32 v13, 16, v13")
        a.e("v_mul_f32 v14, v13, v11")
        a.e("v_mul_f32 v15, v13, v12")
        a.e(f"v_mul_f32 v14, {f32(LOG2E)}, v14")
        a.e("v_exp_f32 v14, v14")
        a.e("v_mul_f32 v15, 0.15915494, v15")
        a.e("v_fract_f32 v15, v15")
        a.e("v_sin_f32 v16, v15")
        a.e("v_cos_f32 v17, v15")
        a.e("s_nop 0")
        a.e(f"v_mul_f32 v{b}, v14, v17")
        a.e(f"v_mul_f32 v{b+1}, v14, v16")
        a.e(f"v_add_f32 v16, -1.0, v{b}")
        a.e("v_mul_f32 v17, v11, v11")
        a.e("v_fma_f32 v17, v12, v12, v17")
        a.e("v_rcp_f32 v18, v17")
        a.e(f"v_mul_f32 v{b+2}, v16, v11")
        a.e(f"v_fma_f32 v{b+2}, v{b+1}, v12, v{b+2}")
        a.e(f"v_mul_f32 v{b+3}, v{b+1}, v11")
        a.e(f"v_fma_f32 v{b+3}, -v16, v12, v{b+3}")
        a.e("v_add_f32 v18, v18, v18")
        a.e(f"v_mul_f32 v{b+2}, v{b+2}, v18")
        a.e(f"v_mul_f32 v{b+3}, v{b+3}, v18")
        a.e(f"v_mov_b32 v{b+4}, v{b}")
        a.e(f"v_mov_b32 v{b+5}, v{b+1}")
        for i in range(4):
            cmul(a, b+4, b+5, b+4, b+5, b+4, b+5, 16)
    for r in range(36, 40): a.e(f"v_mov_b32 v{r}, 0")
    def step(c, s, hr):
        b = 20 + 8 * c
        u = 128 + 4*s + 2*c
        t = 40 + 2 * c
        a.e(f"v_pk_fma_f32 {vr(t,2)}, {vr(b,2)}, {vr(hr,2)}, {vr(u,2)} op_sel:[0,0,0] op_sel_hi:[0,1,1]")
        a.e(f"v_pk_fma_f32 {vr(hr,2)}, {vr(b,2)}, {vr(hr,2)}, {vr(t,2)} op_sel:[1,1,0] op_sel_hi:[1,0,1] neg_lo:[1,0,0]")
    def cfma(d, m, x, y, t):
        a.e(f"v_pk_fma_f32 {vr(t,2)}, {vr(m,2)}, {vr(x,2)}, {vr(y,2)} op_sel:[0,0,0] op_sel_hi:[0,1,1]")
        a.e(f"v_pk_fma_f32 {vr(d,2)}, {vr(m,2)}, {vr(x,2)}, {vr(t,2)} op_sel:[1,1,0] op_sel_hi:[1,0,1] neg_lo:[1,0,0]")
    for s in range(NS):
        a.e(f"s_waitcnt vmcnt({NS-1-s})")
        step(0, s, 36); step(1, s, 38)
    a.e("v_xor_b32 v62, 32, v1")
    a.e("v_lshlrev_b32 v62, 2, v62")
    for r in range(4): a.e(f"ds_bpermute_b32 v{88+r}, v62, v{36+r}")
    a.e("v_cmp_ne_u32 vcc, 0, v19")
    a.e("s_waitcnt lgkmcnt(0)")
    for r in range(4):
        a.e(f"v_cndmask_b32 v{92+r}, v{36+r}, v{88+r}, vcc")
        a.e(f"v_cndmask_b32 v{96+r}, v{88+r}, v{36+r}, vcc")
    for c in range(2):
        cfma(36 + 2*c, 24 + 8*c, 92 + 2*c, 96 + 2*c, 58)
    for c in range(2):
        a.e(f"v_mov_b32 v{46+2*c}, v{24+8*c}")
        a.e(f"v_mov_b32 v{47+2*c}, v{25+8*c}")
        cmul(a, 46+2*c, 47+2*c, 46+2*c, 47+2*c, 46+2*c, 47+2*c, 60)
        a.e(f"v_mov_b32 v{50+2*c}, 1.0")
        a.e(f"v_mov_b32 v{51+2*c}, 0")
    a.e("v_mov_b32 v100, 0")
    a.e("v_mov_b32 v101, 0")
    for d in (1, 2, 4, 8):
        for r in range(4): a.e(f"v_mov_b32 v{54+r}, 0")
        a.e("s_nop 1")
        for r in range(4):
            a.e(f"v_mov_b32_dpp v{54+r}, v{36+r} row_shr:{d} row_mask:0xf bank_mask:0xf")
        a.e(f"v_and_b32 v62, {d}, v3")
        a.e("v_cmp_ne_u32 s[42:43], 0, v62")
        for c in range(2):
            cfma(36 + 2*c, 46 + 2*c, 54 + 2*c, 36 + 2*c, 58)
            cfma(60, 46 + 2*c, 50 + 2*c, 100, 58)
            a.e(f"v_cndmask_b32 v{50+2*c}, v{50+2*c}, v60, s[42:43]")
            a.e(f"v_cndmask_b32 v{51+2*c}, v{51+2*c}, v61, s[42:43]")
            cfma(46 + 2*c, 46 + 2*c, 46 + 2*c, 100, 58)
    a.e("v_cmp_eq_u32 s[40:41], 15, v3")
    a.e("s_nop 3")
    a.e("s_mov_b32 s41, 0")
    a.e("s_lshl_b32 s38, s32, 5")
    a.e("v_lshl_add_u32 v62, v2, 4, s38")
    a.e("s_and_saveexec_b64 s[44:45], s[40:41]")
    a.e("ds_write_b128 v62, v[36:39]")
    a.e("s_mov_b64 exec, s[44:45]")
    for r in range(4): a.e(f"v_mov_b32 v{54+r}, 0")
    a.e("s_nop 1")
    for r in range(4):
        a.e(f"v_mov_b32_dpp v{54+r}, v{36+r} row_shr:1 row_mask:0xf bank_mask:0xf")
    a.e("s_waitcnt lgkmcnt(0)")
    a.e("s_barrier")
    a.e("v_lshlrev_b32 v62, 4, v2")
    for q in range(3):
        a.e(f"ds_read_b128 {vr(64+4*q,4)}, v62 offset:{q*32}")
    for r in range(4): a.e(f"v_mov_b32 v{36+r}, 0")
    a.e("s_waitcnt lgkmcnt(0)")
    for q in range(3):
        a.e(f"s_cmp_le_u32 s32, {q}")
        a.e(f"s_cbranch_scc1 K2_CDONE")
        for c in range(2):
            cfma(36 + 2*c, 46 + 2*c, 36 + 2*c, 64 + 4*q + 2*c, 58)
    a.lab("K2_CDONE")
    for c in range(2):
        cfma(36 + 2*c, 50 + 2*c, 36 + 2*c, 54 + 2*c, 58)
        cfma(60, 24 + 8*c, 36 + 2*c, 92 + 2*c, 58)
        a.e(f"v_cndmask_b32 v{36+2*c}, v{36+2*c}, v60, vcc")
        a.e(f"v_cndmask_b32 v{37+2*c}, v{37+2*c}, v61, vcc")
    for s in range(NS):
        o = 76 + 2 * (s & 3)
        for c in range(2):
            hr = 36 + 2*c
            b = 20 + 8 * c
            step(c, s, hr)
            t = 84 + 2 * c
            a.e(f"v_pk_mul_f32 {vr(t,2)}, {vr(b+2,2)}, {vr(hr,2)} op_sel:[0,0] op_sel_hi:[0,1] neg_hi:[1,0]")
            a.e(f"v_pk_fma_f32 {vr(t,2)}, {vr(b+2,2)}, {vr(hr,2)}, {vr(t,2)} op_sel:[1,1,0] op_sel_hi:[1,0,1] neg_lo:[1,0,0] neg_hi:[1,0,0]")
            a.e(f"v_cvt_pk_bf16_f32 v{o+c}, v{t}, v{t+1}")
        a.e(f"buffer_store_dwordx2 {vr(o,2)}, v9, s[12:15], s35 offen")
        a.e(f"s_add_u32 s35, s35, {36*1024}")
    a.lab("K2_END")
    a.e("s_endpgm")

def gen_k3(a):
    kernel_head(a, "k3_kernel")
    st = Stamper(a, 'stamp3', first=80)
    a.e("s_cmp_ge_u32 s2, 256")
    a.e("s_cbranch_scc1 K3_END2")
    st()
    a.e("s_load_dwordx2 s[4:5], s[0:1], 0")
    a.e("s_load_dwordx2 s[6:7], s[0:1], 64")
    a.e("s_load_dwordx2 s[28:29], s[0:1], 104")
    a.e("s_load_dwordx2 s[30:31], s[0:1], 120")
    acc = lambda rt, j: 184 + (rt * 9 + j) * 4
    D = 3
    cF = lambda slot, j: 40 + (slot * 11 + j) * 4
    hF = lambda slot, rt: 40 + (slot * 11 + 9 + rt) * 4
    a.e("v_lshrrev_b32 v12, 6, v0")
    a.e("s_nop 0")
    a.e("v_readfirstlane_b32 s32, v12")
    a.e("s_and_b32 s37, s2, 3")
    a.e("s_lshr_b32 s36, s2, 2")
    a.e("s_waitcnt lgkmcnt(0)")
    srd_ws(a, 8, 30, OFF_HS, 2048 * 2304)
    srd_ws(a, 12, 30, OFF_CI, 576 * 2304)
    srd_ws(a, 16, 30, OFF_PART, 4 * 2048 * 2304)
    srd(a, 20, 4, 5, 2048 * 1152)
    srd_ws(a, 24, 30, OFF_XN, 2048 * 1152)
    srd(a, 44, 6, 7, 1152)
    srd(a, 48, 28, 29, 2048 * 2304)
    a.e("v_and_b32 v12, 63, v0")
    a.e("v_lshrrev_b32 v13, 4, v12")
    a.e("v_and_b32 v14, 15, v12")
    a.e("v_lshlrev_b32 v4, 4, v12")
    a.e("s_lshl_b32 s39, s36, 1")
    a.e("s_mul_i32 s40, s39, 36")
    a.e("s_mul_i32 s41, s32, 9")
    a.e("s_add_u32 s40, s40, s41")
    a.e("s_lshl_b32 s40, s40, 10")
    a.e("s_mul_i32 s42, s37, 9*36")
    a.e("s_add_u32 s42, s42, s41")
    a.e("s_lshl_b32 s42, s42, 10")
    a.e("s_lshr_b32 s52, s2, 3")
    a.e("s_mul_i32 s53, s52, 57")
    a.e("s_lshr_b32 s53, s53, 9")
    a.e("s_mul_i32 s53, s53, 9")
    a.e("s_sub_u32 s52, s52, s53")
    for ks in range(9):
        a.e(f"s_add_u32 s53, s52, {ks}")
        a.e("s_cmp_ge_u32 s53, 9")
        a.e("s_cselect_b32 s54, 9, 0")
        a.e("s_sub_u32 s53, s53, s54")
        a.e(f"s_lshl_b32 s{60+ks}, s53, 10")
    vm = Cnt("vm", 63)
    def ld(ks):
        a.e(f"s_add_u32 s55, s42, s{60+ks}")
        a.e(f"s_add_u32 s56, s40, s{60+ks}")
        for j in range(9):
            a.e(f"s_add_u32 s43, s55, {(j*36)*1024}")
            a.e(f"buffer_load_dwordx4 {vr(cF(ks%D,j),4)}, v4, s[12:15], s43 offen")
            vm.issue(("C", ks, j))
            if j == 0:
                for rt in range(2):
                    a.e(f"s_add_u32 s43, s56, {(rt*36)*1024}")
                    a.e(f"buffer_load_dwordx4 {vr(hF(ks%D,rt),4)}, v4, s[8:11], s43 offen")
                    vm.issue(("H", ks))
    for ks in range(D): ld(ks)
    a.e("s_mov_b32 s53, 0xffff0000")
    a.e("s_lshr_b32 s54, s39, 5")
    a.e("s_lshl_b32 s54, s54, 9")
    a.e("s_and_b32 s55, s39, 31")
    a.e("s_add_u32 s54, s54, s55")
    a.e("v_lshl_add_u32 v15, v14, 5, s54")
    a.e("v_mul_u32_u24 v6, 0x900, v15")
    a.e("v_lshl_add_u32 v6, v13, 4, v6")
    a.e("s_mul_i32 s54, s37, 576")
    a.e("v_add_u32 v6, s54, v6")
    a.e("v_lshrrev_b32 v7, 1, v6")
    a.e("s_mul_i32 s55, s37, 288")
    a.e("v_lshlrev_b32 v8, 3, v13")
    a.e("v_add_u32 v8, s55, v8")
    XNOFF(a)
    a.e("s_mul_i32 s55, s39, 36")
    a.e("s_mul_i32 s56, s37, 9")
    a.e("s_add_u32 s55, s55, s56")
    a.e("s_lshl_b32 s70, s55, 10")
    for i in range(5):
        b = 72 + 4 * i if i < 5 else None
    def tile_scalars(i):
        a.e(f"s_add_u32 s57, s32, {4*i}")
        a.e("s_min_u32 s57, s57, 17")
        a.e("s_cmp_ge_u32 s57, 9")
        a.e("s_cselect_b32 s58, 9, 0")
        a.e("s_cselect_b32 s59, 1, 0")
        a.e("s_sub_u32 s58, s57, s58")
        a.e(f"s_mul_i32 s{72+i}, s59, 2304")
        a.e("s_lshl_b32 s34, s58, 6")
        a.e(f"s_add_u32 s{72+i}, s{72+i}, s34")
        a.e(f"s_lshr_b32 s34, s{72+i}, 1")
        a.e("s_lshl_b32 s35, s58, 5")
        XNSOFF(a)
        a.e("s_mul_i32 s41, s59, 36")
        a.e("s_add_u32 s41, s41, s58")
        a.e("s_lshl_b32 s41, s41, 10")
        a.e("s_add_u32 s41, s41, s70")
    eR = lambda i: 40 + 22 * i
    eR = lambda i: 40 + 24 * i
    def eload(i):
        tile_scalars(i)
        b = eR(i)
        for k in range(4):
            a.e(f"s_add_u32 s43, s41, {k*2048*2304}")
            a.e(f"buffer_load_dwordx4 {vr(b+4*k,4)}, v4, s[16:19], s43 offen"); vm.issue(("E", i))
        a.e(f"buffer_load_dwordx2 {vr(b+16,2)}, v7, s[20:23], s34 offen"); vm.issue(("E", i))
        a.e(f"buffer_load_dwordx2 {vr(b+18,2)}, v11, s[24:27], s38 offen"); vm.issue(("E", i))
        a.e(f"buffer_load_dwordx2 {vr(b+20,2)}, v8, s[44:47], s35 offen"); vm.issue(("E", i))
    for ks in range(9):
        for j in range(9):
            n = vm.need({("C", ks, j), ("H", ks)})
            if n is not None: a.e(f"s_waitcnt vmcnt({n})")
            for rt in range(2):
                c = "0" if ks == 0 else vr(acc(rt, j), 4)
                a.e(f"v_mfma_f32_16x16x32_bf16 {vr(acc(rt,j),4)}, {vr(cF(ks%D,j),4)}, {vr(hF(ks%D,rt),4)}, {c}")
        if ks + D < 9: ld(ks + D)
        if ks == 6: eload(0)
        if ks == 7: eload(1); eload(2)
        if ks == 8: eload(3); eload(4)
    st()
    a.e("s_nop 7")
    a.e("s_nop 1")
    a.e("s_mul_i32 s52, s32, 18432")
    a.e("v_add_u32 v5, s52, v4")
    for t in range(18):
        rt, j = divmod(t, 9)
        a.e(f"ds_write_b128 v5, {vr(acc(rt,j),4)} offset:{t*1024}")
    a.e("s_lshl_b32 s56, s32, 10")
    a.e("v_add_u32 v9, s56, v4")
    a.e("v_add_u32 v10, 36864, v9")
    a.e("s_waitcnt lgkmcnt(0)")
    a.e("s_barrier")
    for i in range(5):
        if i == 4:
            a.e("s_cmp_ge_u32 s32, 2")
            a.e(f"s_cbranch_scc1 K3_END")
        b = eR(i); L = 184 + 16 * (i & 3)
        for w in range(4):
            a.e(f"ds_read_b128 {vr(L+4*w,4)}, v{9+(w>>1)} offset:{(w&1)*18432 + i*4096}")
        n = vm.need({("E", i)})
        if n is not None: a.e(f"s_waitcnt vmcnt({n})")
        for e in range(4):
            a.e(f"v_add_f32 v{b+e}, v{b+e}, v{b+4+e}")
            a.e(f"v_add_f32 v{b+8+e}, v{b+8+e}, v{b+12+e}")
            a.e(f"v_add_f32 v{b+e}, v{b+e}, v{b+8+e}")
        a.e(f"v_cvt_pk_bf16_f32 v{b+4}, v{b}, v{b+1}")
        a.e(f"v_cvt_pk_bf16_f32 v{b+5}, v{b+2}, v{b+3}")
        for h in range(2):
            a.e(f"v_lshlrev_b32 v{b+2*h}, 16, v{b+4+h}")
            a.e(f"v_and_b32 v{b+1+2*h}, s53, v{b+4+h}")
            a.e(f"v_lshlrev_b32 v{20+2*h}, 16, v{b+16+h}")
            a.e(f"v_and_b32 v{21+2*h}, s53, v{b+16+h}")
            a.e(f"v_lshlrev_b32 v{24+2*h}, 16, v{b+18+h}")
            a.e(f"v_and_b32 v{25+2*h}, s53, v{b+18+h}")
            a.e(f"v_lshlrev_b32 v{28+2*h}, 16, v{b+20+h}")
            a.e(f"v_and_b32 v{29+2*h}, s53, v{b+20+h}")
        for e in range(4):
            a.e(f"v_mul_f32 v{24+e}, v{24+e}, v{28+e}")
        a.e("v_cvt_pk_bf16_f32 v32, v24, v25")
        a.e("v_cvt_pk_bf16_f32 v33, v26, v27")
        for h in range(2):
            a.e(f"v_lshlrev_b32 v{24+2*h}, 16, v{32+h}")
            a.e(f"v_and_b32 v{25+2*h}, s53, v{32+h}")
        a.e("s_waitcnt lgkmcnt(0)")
        for e in range(4):
            a.e(f"v_add_f32 v{L+e}, v{L+e}, v{L+4+e}")
            a.e(f"v_add_f32 v{L+8+e}, v{L+8+e}, v{L+12+e}")
            a.e(f"v_add_f32 v{L+e}, v{L+e}, v{L+8+e}")
            a.e(f"v_add_f32 v{L+e}, v{L+e}, v{24+e}")
            a.e(f"v_add_f32 v{L+e}, v{20+e}, v{L+e}")
            a.e(f"v_add_f32 v{b+8+e}, v{L+e}, v{b+e}")
        a.e(f"buffer_store_dwordx4 {vr(b+8,4)}, v6, s[48:51], s{72+i} offen")
    a.lab("K3_END")
    st.dump()
    a.lab("K3_END2")
    a.e("s_endpgm")

def XNOFF(a):
    if not M32:
        a.e("s_mul_i32 s55, s39, 18432")
        a.e("s_mul_i32 s56, s37, 4608")
        a.e("s_add_u32 s55, s55, s56")
        a.e("v_lshrrev_b32 v16, 1, v13")
        a.e("v_lshlrev_b32 v16, 8, v16")
        a.e("v_lshl_add_u32 v16, v14, 4, v16")
        a.e("v_and_b32 v17, 1, v13")
        a.e("v_lshl_add_u32 v16, v17, 3, v16")
        a.e("v_add_u32 v11, s55, v16")
        return
    a.e("s_mul_i32 s55, s36, 36864")
    a.e("s_mul_i32 s56, s37, 9216")
    a.e("s_add_u32 s55, s55, s56")
    a.e("v_lshrrev_b32 v16, 1, v13")
    a.e("v_lshlrev_b32 v16, 9, v16")
    a.e("v_lshl_add_u32 v16, v14, 4, v16")
    a.e("v_and_b32 v17, 1, v13")
    a.e("v_lshl_add_u32 v16, v17, 3, v16")
    a.e("v_add_u32 v11, s55, v16")
def XNSOFF(a):
    if not M32:
        a.e("s_mul_i32 s38, s59, 18432")
        a.e("s_lshl_b32 s41, s58, 9")
        a.e("s_add_u32 s38, s38, s41")
        return
    a.e("s_lshl_b32 s38, s59, 8")
    a.e("s_lshl_b32 s41, s58, 10")
    a.e("s_add_u32 s38, s38, s41")

def gen(a):
    gen_k2(a)
    gen_k3(a)
    return [kd("k2_kernel", 256, 102), kd("k3_kernel", 256, 102)]
```

```python
import sys
sys.path.insert(0, "dev")
from common import *

def gen_k0(a):
    kernel_head(a, "k0_kernel")
    a.e("s_cmp_ge_u32 s2, 836")
    a.e("s_cbranch_scc1 K0_END")
    a.e("s_cmp_lt_u32 s2, 256")
    a.e("s_cbranch_scc1 K0_PF")
    a.e("s_sub_u32 s2, s2, 256")
    a.e("s_load_dwordx2 s[4:5], s[0:1], 0")
    a.e("s_load_dwordx4 s[8:11], s[0:1], 24")
    a.e("s_load_dwordx4 s[12:15], s[0:1], 40")
    a.e("s_load_dwordx2 s[6:7], s[0:1], 120")
    a.e("s_waitcnt lgkmcnt(0)")
    a.e("s_cmp_ge_u32 s2, 256")
    a.e("s_cbranch_scc1 K0_B")
    srd(a, 16, 4, 5, 2048 * 1152)
    srd_ws(a, 20, 6, OFF_XN, 2048 * 1152)
    a.e("v_lshrrev_b32 v1, 5, v0")
    a.e("v_and_b32 v2, 31, v0")
    a.e("s_lshl_b32 s24, s2, 3")
    a.e("v_add_u32 v1, s24, v1")
    a.e("v_mul_u32_u24 v3, 0x480, v1")
    a.e("v_lshl_add_u32 v3, v2, 2, v3")
    for i in range(9):
        a.e(f"buffer_load_dword v{10+i}, v3, s[16:19], 0 offen offset:{128*i}")
    if M32:
        a.e("v_lshrrev_b32 v44, 9, v1")
        a.e("v_and_b32 v45, 31, v1")
        a.e("v_lshl_add_u32 v44, v44, 5, v45")
        a.e("v_bfe_u32 v45, v1, 5, 4")
        a.e("v_and_b32 v46, 1, v44")
        a.e("v_lshl_add_u32 v45, v46, 4, v45")
        a.e("v_lshrrev_b32 v44, 1, v44")
        a.e("v_mul_u32_u24 v44, 0x9000, v44")
        a.e("v_lshl_add_u32 v44, v45, 4, v44")
        a.e("v_lshrrev_b32 v45, 2, v2")
        a.e("v_lshl_add_u32 v44, v45, 9, v44")
        a.e("v_and_b32 v45, 3, v2")
        a.e("v_lshl_add_u32 v44, v45, 2, v44")
    else:
        a.e("v_lshrrev_b32 v44, 9, v1")
        a.e("v_and_b32 v45, 31, v1")
        a.e("v_lshl_add_u32 v44, v44, 5, v45")
        a.e("v_bfe_u32 v45, v1, 5, 4")
        a.e("v_mul_u32_u24 v44, 0x4800, v44")
        a.e("v_lshl_add_u32 v44, v45, 4, v44")
        a.e("v_lshrrev_b32 v45, 2, v2")
        a.e("v_lshl_add_u32 v44, v45, 8, v44")
        a.e("v_and_b32 v45, 3, v2")
        a.e("v_lshl_add_u32 v44, v45, 2, v44")
    a.e("s_mov_b32 s25, 0xffff0000")
    a.e("s_waitcnt vmcnt(0)")
    for i in range(9):
        a.e(f"v_lshlrev_b32 v{20+2*i}, 16, v{10+i}")
        a.e(f"v_and_b32 v{21+2*i}, s25, v{10+i}")
    a.e("v_add_f32 v4, v20, v21")
    a.e("v_add_f32 v5, v22, v23")
    for i in range(2, 9):
        a.e(f"v_add_f32 v{4+(i&1)}, v{4+(i&1)}, v{20+2*i}")
        a.e(f"v_add_f32 v{4+(i&1)}, v{4+(i&1)}, v{21+2*i}")
    a.e("v_add_f32 v4, v4, v5")
    def reduce32(r):
        for off in (0x041F, 0x081F, 0x101F, 0x201F, 0x401F):
            a.e(f"ds_swizzle_b32 v9, v{r} offset:{off}")
            a.e("s_waitcnt lgkmcnt(0)")
            a.e(f"v_add_f32 v{r}, v{r}, v9")
    reduce32(4)
    a.e(f"v_mul_f32 v5, {f32(1.0/576)}, v4")
    a.e("v_mov_b32 v6, 0")
    a.e("v_mov_b32 v7, 0")
    for i in range(18):
        a.e(f"v_sub_f32 v8, v{20+i}, v5")
        a.e(f"v_fma_f32 v{6+(i&1)}, v8, v8, v{6+(i&1)}")
    a.e("v_add_f32 v6, v6, v7")
    reduce32(6)
    a.e(f"v_mul_f32 v6, {f32(1.0/576)}, v6")
    a.e("v_cvt_pk_bf16_f32 v7, v5, v6")
    a.e("v_lshlrev_b32 v5, 16, v7")
    a.e("v_and_b32 v6, s25, v7")
    a.e(f"v_add_f32 v6, {f32(1e-5)}, v6")
    a.e("v_cvt_pk_bf16_f32 v7, v6, v6")
    a.e("v_lshlrev_b32 v6, 16, v7")
    a.e("v_sqrt_f32 v6, v6")
    a.e("s_nop 0")
    a.e("v_cvt_pk_bf16_f32 v7, v6, v6")
    a.e("v_lshlrev_b32 v6, 16, v7")
    a.e("v_rcp_f32 v8, v6")
    a.e("s_nop 0")
    for i in range(9):
        x0, x1 = 20 + 2*i, 21 + 2*i
        a.e(f"v_sub_f32 v{x0}, v{x0}, v5")
        a.e(f"v_sub_f32 v{x1}, v{x1}, v5")
        a.e(f"v_cvt_pk_bf16_f32 v7, v{x0}, v{x1}")
        a.e(f"v_lshlrev_b32 v{x0}, 16, v7")
        a.e(f"v_and_b32 v{x1}, s25, v7")
        a.e(f"v_mul_f32 v40, v{x0}, v8")
        a.e(f"v_mul_f32 v41, v{x1}, v8")
        a.e(f"v_fma_f32 v42, -v40, v6, v{x0}")
        a.e(f"v_fma_f32 v43, -v41, v6, v{x1}")
        a.e(f"v_fma_f32 v40, v42, v8, v40")
        a.e(f"v_fma_f32 v41, v43, v8, v41")
        a.e(f"v_cvt_pk_bf16_f32 v{10+i}, v40, v41")
        a.e(f"s_mov_b32 s26, {i*(4096 if M32 else 2048)}")
        a.e(f"buffer_store_dword v{10+i}, v44, s[20:23], s26 offen")
    a.e("s_endpgm")
    a.lab("K0_B")
    a.e("s_cmp_ge_u32 s2, 418")
    a.e("s_cbranch_scc1 K0_C")
    srd(a, 16, 8, 9, 576 * 1152)
    srd(a, 20, 10, 11, 576 * 1152)
    srd_ws(a, 24, 6, OFF_WB, 576 * 9216)
    a.e("s_sub_u32 s28, s2, 256")
    a.e("s_mul_i32 s29, s28, 57")
    a.e("s_lshr_b32 s29, s29, 9")
    a.e("s_mul_i32 s30, s29, 9")
    a.e("s_sub_u32 s30, s28, s30")
    a.e("v_lshrrev_b32 v1, 6, v0")
    a.e("v_and_b32 v2, 63, v0")
    a.e("s_lshl_b32 s29, s29, 2")
    a.e("v_add_u32 v1, s29, v1")
    a.e("s_lshl_b32 s30, s30, 6")
    a.e("v_add_u32 v2, s30, v2")
    a.e("v_mul_u32_u24 v3, 0x480, v2")
    a.e("v_lshl_add_u32 v3, v1, 4, v3")
    a.e("buffer_load_dwordx4 v[8:11], v3, s[16:19], 0 offen")
    a.e("buffer_load_dwordx4 v[12:15], v3, s[20:23], 0 offen")
    a.e("v_mul_u32_u24 v4, 0x12000, v1")
    a.e("v_lshl_add_u32 v4, v2, 2, v4")
    a.e("s_mov_b32 s31, 0x05040100")
    a.e("s_mov_b32 s32, 0x07060302")
    a.e("s_mov_b32 s33, 9216")
    a.e("s_waitcnt vmcnt(0)")
    for i in range(4):
        a.e(f"v_perm_b32 v{16+2*i}, v{12+i}, v{8+i}, s31")
        a.e(f"v_perm_b32 v{17+2*i}, v{12+i}, v{8+i}, s32")
    for i in range(8):
        a.e(f"buffer_store_dword v{16+i}, v4, s[24:27], 0 offen")
        if i < 7: a.e("v_add_u32 v4, s33, v4")
    a.e("s_endpgm")
    a.lab("K0_C")
    srd(a, 16, 12, 13, 576 * 1152)
    srd(a, 20, 14, 15, 576 * 1152)
    srd_ws(a, 24, 6, OFF_CI, 576 * 2304)
    a.e("v_lshrrev_b32 v1, 6, v0")
    a.e("s_nop 0")
    a.e("v_readfirstlane_b32 s29, v1")
    a.e("s_sub_u32 s28, s2, 418")
    a.e("s_lshl_b32 s28, s28, 2")
    a.e("s_add_u32 s28, s28, s29")
    a.e("s_mul_i32 s29, s28, 3641")
    a.e("s_lshr_b32 s29, s29, 16")
    a.e("s_mul_i32 s30, s29, 18")
    a.e("s_sub_u32 s30, s28, s30")
    a.e("v_and_b32 v1, 15, v0")
    a.e("v_bfe_u32 v2, v0, 4, 2")
    a.e("s_lshl_b32 s31, s30, 2")
    a.e("v_add_u32 v2, s31, v2")
    a.e("s_lshl_b32 s31, s29, 4")
    a.e("v_add_u32 v3, s31, v1")
    a.e("v_mul_u32_u24 v3, 0x480, v3")
    a.e("v_lshl_add_u32 v3, v2, 4, v3")
    a.e("buffer_load_dwordx4 v[8:11], v3, s[16:19], 0 offen")
    a.e("buffer_load_dwordx4 v[12:15], v3, s[20:23], 0 offen")
    a.e("s_mul_i32 s31, s29, 36864")
    a.e("v_lshlrev_b32 v4, 9, v2")
    a.e("v_lshl_add_u32 v4, v1, 4, v4")
    a.e("v_add_u32 v4, s31, v4")
    a.e("s_mov_b32 s31, 0x05040100")
    a.e("s_mov_b32 s32, 0x07060302")
    a.e("s_waitcnt vmcnt(0)")
    for i in range(4):
        a.e(f"v_perm_b32 v{16+2*i}, v{12+i}, v{8+i}, s31")
        a.e(f"v_perm_b32 v{17+2*i}, v{12+i}, v{8+i}, s32")
    a.e("buffer_store_dwordx4 v[16:19], v4, s[24:27], 0 offen")
    a.e("buffer_store_dwordx4 v[20:23], v4, s[24:27], 0 offen offset:256")
    a.lab("K0_END")
    a.e("s_endpgm")
    a.lab("K0_PF")
    a.e("s_load_dwordx4 s[4:7], s[0:1], 80")
    a.e("s_and_b32 s20, s2, 7")
    a.e("s_lshr_b32 s21, s2, 3")
    a.e("s_mul_i32 s20, s20, 1152")
    a.e(f"s_mul_i32 s21, s21, {18*9216}")
    a.e("s_add_u32 s20, s20, s21")
    a.e("s_movk_i32 s22, 2731")
    a.e("s_waitcnt lgkmcnt(0)")
    srd(a, 8, 4, 5, 576 * 9216)
    srd(a, 12, 6, 7, 576 * 9216)
    if 'nopf0' in ABL: a.e("s_endpgm")
    for i in range(2):
        a.e(f"v_add_u32 v1, {256*i}, v0")
        a.e("v_mul_lo_u32 v2, v1, s22")
        a.e("v_lshrrev_b32 v2, 16, v2")
        a.e("v_mul_u32_u24 v3, 24, v2")
        a.e("v_sub_u32 v3, v1, v3")
        a.e("v_mul_u32_u24 v4, 43, v3")
        a.e("v_lshrrev_b32 v4, 8, v4")
        a.e("v_mul_u32_u24 v5, 6, v4")
        a.e("v_sub_u32 v5, v3, v5")
        a.e("v_min_u32 v2, 17, v2")
        a.e("v_mul_u32_u24 v2, 0x2400, v2")
        a.e("v_mul_u32_u24 v4, 288, v4")
        a.e("v_lshl_add_u32 v2, v5, 4, v2")
        a.e("v_add_u32 v2, v2, v4")
        a.e(f"buffer_load_dwordx4 {vr(8+8*i,4)}, v2, s[8:11], s20 offen")
        a.e(f"buffer_load_dwordx4 {vr(12+8*i,4)}, v2, s[12:15], s20 offen")
    a.e("s_waitcnt vmcnt(0)")
    a.e("s_endpgm")

K1_R = 8
K1_STAGE = 12544
K1_UOFF = 6272
def gen_k1(a):
    R = K1_R
    kernel_head(a, "k1_kernel")
    vA = lambda k16: 112 + k16 * 4
    acc = lambda j: 64 + j * 16
    wF = lambda par, j: 40 + (par * 3 + j) * 4
    vLds = [1, 2]; vDma = [3, 4]; vH = 5; vU = 0
    PK = 6
    TMP = 30
    vPF = 31
    st = Stamper(a, 'stamp1', first=80)
    a.e("s_cmp_ge_u32 s2, 256")
    a.e("s_cbranch_scc1 K1_END")
    st()
    a.e("s_load_dwordx4 s[4:7], s[0:1], 80")
    a.e("s_load_dwordx2 s[30:31], s[0:1], 120")
    a.e("s_load_dwordx2 s[28:29], s[0:1], 96")
    a.e("v_lshrrev_b32 v10, 6, v0")
    a.e("s_nop 0")
    a.e("v_readfirstlane_b32 s32, v10")
    a.e("s_and_b32 s33, s2, 7")
    a.e("s_lshr_b32 s34, s2, 3")
    a.e("s_and_b32 s35, s34, 3")
    a.e("s_lshl_b32 s36, s33, 2")
    a.e("s_add_u32 s36, s36, s35")
    a.e("s_lshr_b32 s37, s34, 2")
    a.e("s_lshl_b32 s38, s33, 1")
    a.e("s_add_u32 s38, s38, s35")
    a.e("s_add_u32 s39, s33, 16")
    a.e("s_cmp_lt_u32 s35, 2")
    a.e("s_cselect_b32 s38, s38, s39")
    a.e("s_cselect_b32 s27, 1, 0")
    a.e("s_cmp_eq_u32 s35, 2")
    a.e("s_cselect_b32 s39, 1, 0")
    a.e("s_cmp_lt_u32 s33, 2")
    a.e("s_cselect_b32 s39, s39, 0")
    a.e("s_or_b32 s27, s27, s39")
    a.e("s_min_u32 s38, s38, 17")
    a.e("s_waitcnt lgkmcnt(0)")
    srd_ws(a, 8, 30, OFF_XN, 2048 * 1152)
    srd_ws(a, 16, 30, OFF_H, 2048 * 9216)
    srd_ws(a, 20, 30, OFF_U, 2048 * 4608)
    a.e(f"s_add_u32 s24, s30, {OFF_WB}")
    a.e("s_addc_u32 s25, s31, 0")
    a.e("s_cmp_lg_u32 s27, 0")
    a.e(f"s_cselect_b32 s22, {2048*4608}, 0")
    a.e(f"s_cselect_b32 s26, {576*9216}, 0")
    a.e("s_cmp_lt_u32 s32, 4")
    a.e("s_cselect_b32 s12, s4, s6")
    a.e("s_cselect_b32 s13, s5, s7")
    a.e(f"s_mov_b32 s14, {576*9216}")
    a.e("s_mov_b32 s15, 0x00020000")
    a.e("s_cselect_b32 s44, 0, 64")
    a.e("v_and_b32 v10, 63, v0")
    a.e("v_lshrrev_b32 v11, 4, v10")
    a.e("v_and_b32 v12, 15, v10")
    a.e("s_lshl_b32 s39, s37, 3")
    a.e("s_add_u32 s39, s39, s32")
    a.e("v_lshlrev_b32 v14, 4, v10")
    a.e("s_mul_i32 s40, s39, 36864")
    a.e("s_mul_i32 s41, s36, 288")
    a.e("s_lshl_b32 s45, s38, 7")
    a.e("s_add_u32 s44, s44, s45")
    a.e("v_lshrrev_b32 v16, 1, v11")
    a.e("v_lshlrev_b32 v16, 3, v16")
    a.e("v_bfe_u32 v17, v10, 2, 2")
    a.e("v_add_u32 v16, v16, v17")
    a.e("v_mul_u32_u24 v16, 96, v16")
    a.e("v_and_b32 v17, 3, v10")
    a.e("v_lshl_add_u32 v16, v17, 3, v16")
    a.e("v_and_b32 v17, 1, v11")
    a.e(f"v_mul_u32_u24 v17, {K1_UOFF}, v17")
    a.e(f"v_add_u32 v{vLds[0]}, v16, v17")
    a.e(f"v_add_u32 v{vLds[1]}, {4*K1_STAGE}, v{vLds[0]}")
    a.e("s_and_b32 s45, s32, 3")
    a.e("s_mul_i32 s46, s45, 96")
    for i in range(2):
        a.e(f"v_add_u32 v16, s46, v10")
        if i: a.e(f"v_add_u32 v16, {64*i}, v16")
        a.e("v_mul_u32_u24 v17, 171, v16")
        a.e("v_lshrrev_b32 v17, 10, v17")
        a.e("v_mul_u32_u24 v18, 6, v17")
        a.e("v_sub_u32 v18, v16, v18")
        a.e("v_and_b32 v17, 63, v17")
        a.e("v_mul_u32_u24 v19, 0x2400, v17")
        a.e(f"v_lshl_add_u32 v{vDma[i]}, v18, 4, v19")
    a.e("s_lshr_b32 s47, s32, 2")
    a.e(f"s_mul_i32 s47, s47, {K1_UOFF}")
    a.e("s_mul_i32 s48, s45, 1536")
    a.e("s_add_u32 s47, s47, s48")
    a.e("s_mul_i32 s42, s39, 294912")
    a.e("s_mul_i32 s43, s36, 4608")
    a.e("s_add_u32 s42, s42, s43")
    a.e("v_and_b32 v17, 1, v11")
    a.e("s_mov_b32 s43, 147456")
    a.e("v_mul_lo_u32 v16, v17, s43")
    a.e("v_lshl_add_u32 v16, v12, 4, v16")
    a.e("v_lshrrev_b32 v18, 5, v10")
    a.e("v_lshl_add_u32 v16, v18, 3, v16")
    a.e(f"v_add_u32 v{vH}, s42, v16")
    a.e("s_mul_i32 s42, s39, 144")
    a.e("s_lshl_b32 s43, s38, 2")
    a.e("s_add_u32 s42, s42, s43")
    a.e("s_lshl_b32 s42, s42, 10")
    a.e("v_mul_u32_u24 v16, 0x12000, v17")
    a.e("v_lshl_add_u32 v16, v12, 4, v16")
    a.e("v_lshl_add_u32 v16, v18, 8, v16")
    a.e(f"v_add_u32 v{vU}, s42, v16")
    a.e("s_mov_b32 s50, 0xffff0000")
    srd(a, 4, 28, 29, 4608 * 1152)
    a.e("s_lshr_b32 s27, s33, 1")
    a.e(f"s_mul_i32 s27, s27, {1152*1152}")
    a.e("s_mul_i32 s56, s34, 41472")
    a.e("s_add_u32 s27, s27, s56")
    a.e("s_mul_i32 s56, s32, 5184")
    a.e("s_add_u32 s27, s27, s56")
    a.e("s_lshl_b32 s57, s32, 10")
    a.e("v_lshlrev_b32 v31, 4, v10")

    vm = Cnt("vm", 63); lg = Cnt("lgkm", 15)
    NST = 36
    a.e("s_lshl_b32 s53, s35, 1")
    a.e("s_add_u32 s53, s53, s37")
    a.e("s_cmp_ge_u32 s53, 9")
    a.e("s_cselect_b32 s54, 9, 0")
    a.e("s_sub_u32 s53, s53, s54")
    if 'norot' in ABL: a.e("s_mov_b32 s53, 0")
    for S in range(9):
        a.e(f"s_add_u32 s54, s53, {S}")
        a.e("s_cmp_ge_u32 s54, 9")
        a.e("s_cselect_b32 s55, 9, 0")
        a.e("s_sub_u32 s54, s54, s55")
        a.e(f"s_mul_i32 s{60+S}, s54, {64*9216}")
        a.e(f"s_lshl_b32 s{70+S}, s54, 12")
        a.e(f"s_add_u32 s{70+S}, s{70+S}, s40")
    def dma_ops(S):
        ops = []
        for i in range(2):
            L = []
            if S == 27 and i == 0:
                L += ["s_mov_b32 s12, s24", "s_mov_b32 s13, s25", "s_mov_b32 s14, s26"]
            if S < 27:
                p, stg = divmod(S, 9)
                L.append(f"s_add_u32 s49, s41, s{60+stg}")
                if p: L.append(f"s_add_u32 s49, s49, {p*96}")
            else:
                L.append(f"s_add_u32 s49, s44, s{60+S-27}")
            if i == 1: L.append("s_mov_b32 exec_hi, 0")
            L.append(f"s_add_u32 m0, s47, {(S % R)*K1_STAGE + i*1024}")
            L.append("s_nop 0")
            L.append(f"buffer_load_dwordx4 v{vDma[i]}, s[12:15], s49 offen lds")
            if i == 1: L.append("s_mov_b32 exec_hi, -1")
            ops.append((("D", S), L))
        return ops
    def aload_ops(S):
        ops = []
        for q in range(4):
            ops.append((("A", S * 4 + q), [f"buffer_load_dwordx4 {vr(vA(S*4+q),4)}, v14, s[8:11], s{70+S} offen offset:{q*1024}"]))
        return ops
    def emit_op(op):
        tag, L = op
        for x in L: a.e(x)
        vm.issue(tag)
    for S in range(2):
        for op in dma_ops(S) + aload_ops(S): emit_op(op)
    next_dma = 2

    def rd(gk, j):
        S, q = divmod(gk, 4)
        base = (S % R) * K1_STAGE + q * 16 * 96 + j * 32
        vb = vLds[0]
        if (S % R) >= 4:
            base -= 4 * K1_STAGE; vb = vLds[1]
        w = wF(gk & 1, j)
        a.e(f"ds_read_b64_tr_b16 {vr(w,2)}, v{vb} offset:{base}")
        a.e(f"ds_read_b64_tr_b16 {vr(w+2,2)}, v{vb} offset:{base+384}")
        lg.issue((gk, j)); lg.issue((gk, j))

    def epi_stream(p):
        out = []
        t = TMP
        for j in range(3):
            for ap in range(2):
                pg = PK + j * 8 + ap * 2; pu = PK + j * 8 + 4 + ap * 2
                for h in range(2):
                    out += [
                        f"v_lshlrev_b32 v{t+2}, 16, v{pg+h}",
                        f"v_and_b32 v{t+3}, s50, v{pg+h}",
                        f"v_mul_f32 v{t+4}, {f32(-LOG2E)}, v{t+2}",
                        f"v_mul_f32 v{t+5}, {f32(-LOG2E)}, v{t+3}",
                        f"v_exp_f32 v{t+4}, v{t+4}",
                        f"v_exp_f32 v{t+5}, v{t+5}",
                        f"v_lshlrev_b32 v{t+6}, 16, v{pu+h}",
                        f"v_add_f32 v{t+4}, 1.0, v{t+4}",
                        f"v_add_f32 v{t+5}, 1.0, v{t+5}",
                        f"v_rcp_f32 v{t+4}, v{t+4}",
                        f"v_rcp_f32 v{t+5}, v{t+5}",
                        f"v_and_b32 v{t+7}, s50, v{pu+h}",
                        f"v_mul_f32 v{t+4}, v{t+2}, v{t+4}",
                        f"v_mul_f32 v{t+5}, v{t+3}, v{t+5}",
                        f"v_cvt_pk_bf16_f32 v{t}, v{t+4}, v{t+5}",
                        f"v_lshlrev_b32 v{t+4}, 16, v{t}",
                        f"v_and_b32 v{t+5}, s50, v{t}",
                        f"v_mul_f32 v{t+4}, v{t+4}, v{t+6}",
                        f"v_mul_f32 v{t+5}, v{t+5}, v{t+7}",
                        f"v_cvt_pk_bf16_f32 v{t+8+h}, v{t+4}, v{t+5}",
                    ]
                out.append(("ST", [f"s_movk_i32 s52, {p*1536}",
                            f"buffer_store_dwordx2 {vr(t+8,2)}, v{vH}, s[16:19], s52 offen offset:{j*512+ap*256}"]))
        return out
    def emit_fill(x):
        if isinstance(x, tuple): emit_op(x)
        else: a.e(x)

    def ntile(p): return 3 if p < 3 else 2
    NG = NST * 4
    fill = []
    for gk in range(NG):
        S, q = divmod(gk, 4)
        p = S // 9; k16 = (S % 9) * 4 + q
        if q == 0:
            if S % 2 == 0: st(lg)
            n = vm.need({("D", S), ("D", S + 1)})
            if n is not None: a.e(f"s_waitcnt vmcnt({n})")
            a.e("s_barrier")
            if gk == 0:
                for g2 in range(2):
                    for j in range(3): rd(g2, j)
            vq = []
            if p == 0 and S + 2 < 9: vq += aload_ops(S + 2)
            nd = 0
            while next_dma < NST and next_dma <= S + R - 1 and nd < 2:
                d = dma_ops(next_dma)
                vq = (d + vq) if nd == 0 else (vq + d)
                next_dma += 1; nd += 1
            if 19 <= S <= 24 and 'nopf' not in ABL:
                vq.append(("PF", [f"s_add_u32 s56, s27, {(S-19)*1024}", f"s_add_u32 m0, s57, {K1_R*12544}", "s_nop 0",
                                  f"buffer_load_dwordx4 v{vPF}, s[4:7], s56 offen lds"]))
            nmf = 4 * ntile(p)
            slots = {}
            for z in range(len(vq)):
                slots.setdefault(1 + (z * (nmf - 1)) // len(vq), []).append(vq[z])
            vsched = sorted(slots.items())
            mf = 0
        if p == 0:
            n = vm.need({("A", k16)})
            if n is not None: a.e(f"s_waitcnt vmcnt({n})")
        for j in range(ntile(p)):
            n = lg.need({(gk, j)})
            if n is not None: a.e(f"s_waitcnt lgkmcnt({n})")
            c = "0" if k16 == 0 else vr(acc(j), 16)
            a.e(f"v_mfma_f32_32x32x16_bf16 {vr(acc(j),16)}, {vr(wF(gk&1,j),4)}, {vr(vA(k16),4)}, {c}")
            mf += 1
            g2 = gk + 2
            if g2 < NG and j < ntile(g2 // 36): rd(g2, j)
            while vsched and vsched[0][0] <= mf:
                for op in vsched.pop(0)[1]: emit_op(op)
            if k16 >= 1:
                for _ in range(3 if p < 3 else 4):
                    if fill: emit_fill(fill.pop(0))
        if q == 3: assert not vsched
        if k16 == 35:
            while fill: emit_fill(fill.pop(0))
            a.e("s_nop 7")
            a.e("s_nop 4")
            if p < 3:
                for j in range(3):
                    for z in range(8):
                        a.e(f"v_cvt_pk_bf16_f32 v{PK+j*8+z}, v{acc(j)+2*z}, v{acc(j)+2*z+1}")
                fill = epi_stream(p)
            else:
                for j in range(2):
                    for ag in range(4):
                        a.e(f"buffer_store_dwordx4 {vr(acc(j)+4*ag,4)}, v{vU}, s[20:23], 0 offen offset:{((ag>>1)*2+j)*1024+(ag&1)*512}")
    st.dump()
    a.lab("K1_END")
    a.e("s_endpgm")

def gen_k1_16(a):
    K1_STAGE = 12288
    R = K1_R
    kernel_head(a, "k1_kernel")
    vA = lambda rt, ks: 112 + (rt * 18 + ks) * 4
    accG = lambda rt, j: 64 + (rt * 3 + j) * 4
    accU = lambda rt, j: 88 + (rt * 3 + j) * 4
    wF = lambda m, j: 40 + (m * 3 + j) * 4
    vLds = [1, 2]; vDma = [3, 4]; vH = 5; vU = 0
    PK = 6
    TMP = 30
    vPF = 31
    st = Stamper(a, 'stamp1', first=56 if False else 80)
    a.e("s_cmp_ge_u32 s2, 256")
    a.e("s_cbranch_scc1 K1_END")
    st()
    a.e("s_load_dwordx4 s[4:7], s[0:1], 80")
    a.e("s_load_dwordx2 s[30:31], s[0:1], 120")
    a.e("s_load_dwordx2 s[28:29], s[0:1], 96")
    a.e("v_lshrrev_b32 v10, 6, v0")
    a.e("s_nop 0")
    a.e("v_readfirstlane_b32 s32, v10")
    a.e("s_and_b32 s33, s2, 7")
    a.e("s_lshr_b32 s34, s2, 3")
    a.e("s_and_b32 s35, s34, 3")
    a.e("s_lshl_b32 s36, s33, 2")
    a.e("s_add_u32 s36, s36, s35")
    a.e("s_lshr_b32 s37, s34, 2")
    a.e("s_mul_i32 s38, s33, 3")
    a.e("s_min_u32 s39, s35, 2")
    a.e("s_add_u32 s38, s38, s39")
    a.e("s_waitcnt lgkmcnt(0)")
    srd_ws(a, 8, 30, OFF_XN, 2048 * 1152)
    srd_ws(a, 16, 30, OFF_H, 2048 * 9216)
    srd_ws(a, 20, 30, OFF_U, 2048 * 4608)
    a.e("s_cmp_lt_u32 s35, 3")
    a.e(f"s_cselect_b32 s22, {2048*4608}, 0")
    a.e(f"s_add_u32 s24, s30, {OFF_WB}")
    a.e("s_addc_u32 s25, s31, 0")
    a.e("s_cmp_lt_u32 s35, 3")
    a.e(f"s_cselect_b32 s26, {576*9216}, 0")
    a.e("s_cmp_lt_u32 s32, 4")
    a.e("s_cselect_b32 s26, s26, 0")
    a.e("s_cselect_b32 s12, s4, s6")
    a.e("s_cselect_b32 s13, s5, s7")
    a.e(f"s_mov_b32 s14, {576*9216}")
    a.e("s_mov_b32 s15, 0x00020000")
    a.e("v_and_b32 v10, 63, v0")
    a.e("v_lshrrev_b32 v11, 4, v10")
    a.e("v_and_b32 v12, 15, v10")
    a.e("s_lshl_b32 s39, s37, 4")
    a.e("s_lshl_b32 s40, s32, 1")
    a.e("s_add_u32 s39, s39, s40")
    a.e("v_lshlrev_b32 v14, 4, v10")
    a.e("s_mul_i32 s40, s39, 18432")
    a.e("s_mul_i32 s41, s36, 288")
    a.e("s_mul_i32 s44, s38, 96")
    a.e("v_lshrrev_b32 v16, 1, v11")
    a.e("v_and_b32 v17, 1, v11")
    a.e("v_lshlrev_b32 v16, 4, v16")
    a.e("v_lshl_add_u32 v16, v17, 2, v16")
    a.e("v_bfe_u32 v17, v10, 2, 2")
    a.e("v_add_u32 v16, v16, v17")
    a.e("v_mul_u32_u24 v16, 96, v16")
    a.e("v_and_b32 v17, 3, v10")
    a.e(f"v_lshl_add_u32 v{vLds[0]}, v17, 3, v16")
    a.e(f"v_add_u32 v{vLds[1]}, {4*K1_STAGE}, v{vLds[0]}")
    a.e("s_and_b32 s45, s32, 3")
    a.e("s_mul_i32 s46, s45, 96")
    for i in range(2):
        a.e(f"v_add_u32 v16, s46, v10")
        if i: a.e(f"v_add_u32 v16, {64*i}, v16")
        a.e("v_mul_u32_u24 v17, 171, v16")
        a.e("v_lshrrev_b32 v17, 10, v17")
        a.e("v_mul_u32_u24 v18, 6, v17")
        a.e("v_sub_u32 v18, v16, v18")
        a.e("v_and_b32 v19, 0x33, v17")
        a.e("v_bfe_u32 v20, v17, 2, 1")
        a.e("v_lshl_add_u32 v19, v20, 3, v19")
        a.e("v_bfe_u32 v20, v17, 3, 1")
        a.e("v_lshl_add_u32 v19, v20, 2, v19")
        a.e("v_mul_u32_u24 v19, 0x2400, v19")
        a.e(f"v_lshl_add_u32 v{vDma[i]}, v18, 4, v19")
    a.e("s_lshr_b32 s47, s32, 2")
    a.e("s_mul_i32 s47, s47, 6144")
    a.e("s_mul_i32 s48, s45, 1536")
    a.e("s_add_u32 s47, s47, s48")
    a.e("s_mul_i32 s42, s39, 147456")
    a.e("s_mul_i32 s43, s36, 4608")
    a.e("s_add_u32 s42, s42, s43")
    a.e("v_lshrrev_b32 v16, 1, v11")
    a.e("v_lshlrev_b32 v16, 8, v16")
    a.e("v_lshl_add_u32 v16, v12, 4, v16")
    a.e("v_and_b32 v17, 1, v11")
    a.e("v_lshl_add_u32 v16, v17, 3, v16")
    a.e(f"v_add_u32 v{vH}, s42, v16")
    a.e("s_mul_i32 s42, s39, 72")
    a.e("s_mul_i32 s43, s38, 3")
    a.e("s_add_u32 s42, s42, s43")
    a.e("s_lshl_b32 s42, s42, 10")
    a.e(f"v_add_u32 v{vU}, s42, v14")
    a.e("s_mov_b32 s50, 0xffff0000")
    a.e("s_mov_b32 s51, 73728")
    srd(a, 4, 28, 29, 4608 * 1152)
    a.e("s_lshr_b32 s27, s33, 1")
    a.e(f"s_mul_i32 s27, s27, {1152*1152}")
    a.e("s_mul_i32 s56, s34, 41472")
    a.e("s_add_u32 s27, s27, s56")
    a.e("s_mul_i32 s56, s32, 5184")
    a.e("s_add_u32 s27, s27, s56")
    a.e("s_lshl_b32 s57, s32, 10")
    a.e("v_lshlrev_b32 v31, 4, v10")

    vm = Cnt("vm", 63); lg = Cnt("lgkm", 15)
    NST = 36
    a.e("s_lshl_b32 s53, s35, 1")
    a.e("s_add_u32 s53, s53, s37")
    a.e("s_cmp_ge_u32 s53, 9")
    a.e("s_cselect_b32 s54, 9, 0")
    a.e("s_sub_u32 s53, s53, s54")
    if 'norot' in ABL: a.e("s_mov_b32 s53, 0")
    for S in range(9):
        a.e(f"s_add_u32 s54, s53, {S}")
        a.e("s_cmp_ge_u32 s54, 9")
        a.e("s_cselect_b32 s55, 9, 0")
        a.e("s_sub_u32 s54, s54, s55")
        a.e(f"s_mul_i32 s{60+S}, s54, {64*9216}")
        a.e(f"s_lshl_b32 s{70+S}, s54, 11")
        a.e(f"s_add_u32 s{70+S}, s{70+S}, s40")
    def dma_ops(S):
        ops = []
        for i in range(2):
            L = []
            if S == 27 and i == 0:
                L += ["s_mov_b32 s12, s24", "s_mov_b32 s13, s25", "s_mov_b32 s14, s26"]
            if S < 27:
                p, stg = divmod(S, 9)
                L.append(f"s_add_u32 s49, s41, s{60+stg}")
                if p: L.append(f"s_add_u32 s49, s49, {p*96}")
            else:
                L.append(f"s_add_u32 s49, s44, s{60+S-27}")
            if i == 1: L.append("s_mov_b32 exec_hi, 0")
            L.append(f"s_add_u32 m0, s47, {(S % R)*K1_STAGE + i*1024}")
            L.append("s_nop 0")
            L.append(f"buffer_load_dwordx4 v{vDma[i]}, s[12:15], s49 offen lds")
            if i == 1: L.append("s_mov_b32 exec_hi, -1")
            ops.append((("D", S), L))
        return ops
    def aload_ops(ks):
        ops = []
        for rt in range(2):
            L = [f"s_add_u32 s49, s{70+ks//2}, {(rt*18+(ks&1))*1024}",
                 f"buffer_load_dwordx4 {vr(vA(rt,ks),4)}, v14, s[8:11], s49 offen"]
            ops.append((("A", ks), L))
        return ops
    def emit_op(op):
        tag, L = op
        for x in L: a.e(x)
        vm.issue(tag)
    for S in range(2):
        for op in dma_ops(S) + aload_ops(2 * S) + aload_ops(2 * S + 1): emit_op(op)
    next_dma = 2

    def rd(S, half, m, j):
        base = (S % R) * K1_STAGE + m * 6144 + half * 3072 + j * 32
        vb = vLds[0]
        if (S % R) >= 4:
            base -= 4 * K1_STAGE; vb = vLds[1]
        w = wF(m, j)
        a.e(f"ds_read_b64_tr_b16 {vr(w,2)}, v{vb} offset:{base}")
        a.e(f"ds_read_b64_tr_b16 {vr(w+2,2)}, v{vb} offset:{base+768}")
        lg.issue((m, j)); lg.issue((m, j))

    def epi_stream(p, t=None, pk=None):
        out = []
        t = TMP
        for rt in range(2):
            for j in range(3):
                pg = PK + (rt * 3 + j) * 2; pu = PK + 12 + (rt * 3 + j) * 2
                for h in range(2):
                    out += [
                        f"v_lshlrev_b32 v{t+2}, 16, v{pg+h}",
                        f"v_and_b32 v{t+3}, s50, v{pg+h}",
                        f"v_mul_f32 v{t+4}, {f32(-LOG2E)}, v{t+2}",
                        f"v_mul_f32 v{t+5}, {f32(-LOG2E)}, v{t+3}",
                        f"v_exp_f32 v{t+4}, v{t+4}",
                        f"v_exp_f32 v{t+5}, v{t+5}",
                        f"v_lshlrev_b32 v{t+6}, 16, v{pu+h}",
                        f"v_add_f32 v{t+4}, 1.0, v{t+4}",
                        f"v_add_f32 v{t+5}, 1.0, v{t+5}",
                        f"v_rcp_f32 v{t+4}, v{t+4}",
                        f"v_rcp_f32 v{t+5}, v{t+5}",
                        f"v_and_b32 v{t+7}, s50, v{pu+h}",
                        f"v_mul_f32 v{t+4}, v{t+2}, v{t+4}",
                        f"v_mul_f32 v{t+5}, v{t+3}, v{t+5}",
                        f"v_cvt_pk_bf16_f32 v{t}, v{t+4}, v{t+5}",
                        f"v_lshlrev_b32 v{t+4}, 16, v{t}",
                        f"v_and_b32 v{t+5}, s50, v{t}",
                        f"v_mul_f32 v{t+4}, v{t+4}, v{t+6}",
                        f"v_mul_f32 v{t+5}, v{t+5}, v{t+7}",
                        f"v_cvt_pk_bf16_f32 v{t+8+h}, v{t+4}, v{t+5}",
                    ]
                out.append(("ST", [f"s_mov_b32 s52, {rt*147456 + p*1536}",
                            f"buffer_store_dwordx2 {vr(t+8,2)}, v{vH}, s[16:19], s52 offen offset:{j*512}"]))
        return out
    def emit_fill(x):
        if isinstance(x, tuple): emit_op(x)
        else: a.e(x)

    steps = []
    for S in range(NST):
        for half in range(2):
            steps.append((S, half, S // 9, (S % 9) * 2 + half))
    def mats(p): return (0, 1) if p < 3 else (0,)
    fill = []
    vq = []
    for idx, (S, half, p, ks) in enumerate(steps):
        if half == 0:
            assert not vq
            if S % 2 == 0: st(lg)
            n = vm.need({("D", S), ("D", S + 1)})
            if n is not None: a.e(f"s_waitcnt vmcnt({n})")
            a.e("s_barrier")
            if idx == 0:
                for m in mats(p):
                    for j in range(3): rd(S, 0, m, j)
            if p == 0 and S + 2 < 9:
                vq += aload_ops(2 * (S + 2)) + aload_ops(2 * (S + 2) + 1)
            nd = 0
            while next_dma < NST and next_dma <= S + R - 1 and nd < 2:
                d = dma_ops(next_dma)
                if nd == 0: vq = d + vq
                else: vq = vq + d
                next_dma += 1; nd += 1
            if 19 <= S <= 24 and 'nopf' not in ABL:
                vq.append(("PF", [f"s_add_u32 s56, s27, {(S-19)*1024}", f"s_add_u32 m0, s57, {K1_R*12544}", "s_nop 0",
                                  f"buffer_load_dwordx4 v{vPF}, s[4:7], s56 offen lds"]))
            nmf = 24 if p < 3 else 12
            slots = {}
            for q in range(len(vq)):
                slots.setdefault(1 + (q * (nmf - 2)) // len(vq), []).append(q)
            vsched = [(k, [vq[q] for q in v]) for k, v in sorted(slots.items())]
            vq = []
            mf = 0
        if p == 0:
            n = vm.need({("A", ks)})
            if n is not None: a.e(f"s_waitcnt vmcnt({n})")
        nxt = steps[idx + 1] if idx + 1 < len(steps) else None
        for m in mats(p):
            for j in range(3):
                n = lg.need({(m, j)})
                if n is not None: a.e(f"s_waitcnt lgkmcnt({n})")
                for rt in range(2):
                    acc = (accG if m == 0 else accU)(rt, j)
                    c = "0" if ks == 0 else vr(acc, 4)
                    a.e(f"v_mfma_f32_16x16x32_bf16 {vr(acc,4)}, {vr(wF(m,j),4)}, {vr(vA(rt,ks),4)}, {c}")
                    mf += 1
                    while vsched and vsched[0][0] <= mf:
                        for op in vsched.pop(0)[1]: emit_op(op)
                    if ks >= 1 or p == 3:
                        nf = (2 if rt == 0 else 1) if p < 3 else 3
                        for _ in range(nf):
                            if fill: emit_fill(fill.pop(0))
                if nxt is not None and m in mats(nxt[2]):
                    rd(nxt[0], nxt[1], m, j)
        if half == 1: assert not vsched
        if ks == 17:
            while fill: emit_fill(fill.pop(0))
            a.e("s_nop 7")
            a.e("s_nop 1")
            if p < 3:
                for rt in range(2):
                    for j in range(3):
                        for h in range(2):
                            a.e(f"v_cvt_pk_bf16_f32 v{PK+(rt*3+j)*2+h}, v{accG(rt,j)+2*h}, v{accG(rt,j)+2*h+1}")
                            a.e(f"v_cvt_pk_bf16_f32 v{PK+12+(rt*3+j)*2+h}, v{accU(rt,j)+2*h}, v{accU(rt,j)+2*h+1}")
                fill = epi_stream(p)
            else:
                for rt in range(2):
                    for j in range(3):
                        so = "0" if rt == 0 else "s51"
                        a.e(f"buffer_store_dwordx4 {vr(accG(rt,j),4)}, v{vU}, s[20:23], {so} offen offset:{j*1024}")
    st.dump()
    a.lab("K1_END")
    a.e("s_endpgm")

def main():
    a = Asm()
    hdr = open(f"cdna_kernels/{NAME}.s.ref").read().split("\n")
    for l in hdr:
        if l.startswith("; @launch") or l.startswith("; Override") or l.startswith("; grid=ceil"): continue
        if not l.startswith(";"): break
        a.raw(l)
    import gen2
    launches = [("k0_kernel", 836, 256, 0), ("k1_kernel", 256, 512, K1_R * K1_STAGE + 8192)] + gen2.launches()
    for k, g, b, l in launches:
        a.raw(f"; @launch kernel={k} grid=({g},1,1) block=({b},1,1) lds={l}")
    a.raw('.amdgcn_target "amdgcn-amd-amdhsa--gfx950"')
    a.raw(".text")
    a.sc1 = 'k0sc1' in ABL
    gen_k0(a)
    a.sc1 = True
    (gen_k1 if M32 else gen_k1_16)(a)
    kds = [kd("k0_kernel", 64), kd("k1_kernel", 256, 102)]
    kds += gen2.gen(a)
    a.raw('.section .rodata,"a"')
    for k in kds: a.raw(k)
    out = sys.argv[1] if len(sys.argv) > 1 else f"cdna_kernels/{NAME}.s"
    open(out, "w").write("\n".join(a.L) + "\n")

if __name__ == "__main__":
    main()
```

```python
import sys
sys.path.insert(0, "dev")
from common import *

def gen_k0(a):
    kernel_head(a, "k0_kernel")
    if 'nopf0' in ABL:
        a.e("s_cmp_ge_u32 s2, 580")
        a.e("s_cbranch_scc1 K0_END")
    else:
        a.e("s_cmp_ge_u32 s2, 836")
        a.e("s_cbranch_scc1 K0_END")
        a.e("s_cmp_lt_u32 s2, 256")
        a.e("s_cbranch_scc1 K0_PF")
        a.e("s_sub_u32 s2, s2, 256")
    a.e("s_load_dwordx2 s[4:5], s[0:1], 0")
    a.e("s_load_dwordx4 s[8:11], s[0:1], 24")
    a.e("s_load_dwordx4 s[12:15], s[0:1], 40")
    a.e("s_load_dwordx2 s[6:7], s[0:1], 120")
    a.e("s_waitcnt lgkmcnt(0)")
    a.e("s_cmp_ge_u32 s2, 256")
    a.e("s_cbranch_scc1 K0_B")
    srd(a, 16, 4, 5, 2048 * 1152)
    srd_ws(a, 20, 6, OFF_XN, 2048 * 1152)
    a.e("v_lshrrev_b32 v1, 5, v0")
    a.e("v_and_b32 v2, 31, v0")
    a.e("s_lshl_b32 s24, s2, 3")
    a.e("v_add_u32 v1, s24, v1")
    a.e("v_mul_u32_u24 v3, 0x480, v1")
    a.e("v_lshl_add_u32 v3, v2, 2, v3")
    for i in range(9):
        a.e(f"buffer_load_dword v{10+i}, v3, s[16:19], 0 offen offset:{128*i}")
    if M32:
        a.e("v_lshrrev_b32 v44, 9, v1")
        a.e("v_and_b32 v45, 31, v1")
        a.e("v_lshl_add_u32 v44, v44, 5, v45")
        a.e("v_bfe_u32 v45, v1, 5, 4")
        a.e("v_and_b32 v46, 1, v44")
        a.e("v_lshl_add_u32 v45, v46, 4, v45")
        a.e("v_lshrrev_b32 v44, 1, v44")
        a.e("v_mul_u32_u24 v44, 0x9000, v44")
        a.e("v_lshl_add_u32 v44, v45, 4, v44")
        a.e("v_lshrrev_b32 v45, 2, v2")
        a.e("v_lshl_add_u32 v44, v45, 9, v44")
        a.e("v_and_b32 v45, 3, v2")
        a.e("v_lshl_add_u32 v44, v45, 2, v44")
    else:
        a.e("v_lshrrev_b32 v44, 9, v1")
        a.e("v_and_b32 v45, 31, v1")
        a.e("v_lshl_add_u32 v44, v44, 5, v45")
        a.e("v_bfe_u32 v45, v1, 5, 4")
        a.e("v_mul_u32_u24 v44, 0x4800, v44")
        a.e("v_lshl_add_u32 v44, v45, 4, v44")
        a.e("v_lshrrev_b32 v45, 2, v2")
        a.e("v_lshl_add_u32 v44, v45, 8, v44")
        a.e("v_and_b32 v45, 3, v2")
        a.e("v_lshl_add_u32 v44, v45, 2, v44")
    a.e("s_mov_b32 s25, 0xffff0000")
    a.e("s_waitcnt vmcnt(0)")
    for i in range(9):
        a.e(f"v_lshlrev_b32 v{20+2*i}, 16, v{10+i}")
        a.e(f"v_and_b32 v{21+2*i}, s25, v{10+i}")
    a.e("v_add_f32 v4, v20, v21")
    a.e("v_add_f32 v5, v22, v23")
    for i in range(2, 9):
        a.e(f"v_add_f32 v{4+(i&1)}, v{4+(i&1)}, v{20+2*i}")
        a.e(f"v_add_f32 v{4+(i&1)}, v{4+(i&1)}, v{21+2*i}")
    a.e("v_add_f32 v4, v4, v5")
    def reduce32(r):
        for off in (0x041F, 0x081F, 0x101F, 0x201F, 0x401F):
            a.e(f"ds_swizzle_b32 v9, v{r} offset:{off}")
            a.e("s_waitcnt lgkmcnt(0)")
            a.e(f"v_add_f32 v{r}, v{r}, v9")
    reduce32(4)
    a.e(f"v_mul_f32 v5, {f32(1.0/576)}, v4")
    a.e("v_mov_b32 v6, 0")
    a.e("v_mov_b32 v7, 0")
    for i in range(18):
        a.e(f"v_sub_f32 v8, v{20+i}, v5")
        a.e(f"v_fma_f32 v{6+(i&1)}, v8, v8, v{6+(i&1)}")
    a.e("v_add_f32 v6, v6, v7")
    reduce32(6)
    a.e(f"v_mul_f32 v6, {f32(1.0/576)}, v6")
    a.e("v_cvt_pk_bf16_f32 v7, v5, v6")
    a.e("v_lshlrev_b32 v5, 16, v7")
    a.e("v_and_b32 v6, s25, v7")
    a.e(f"v_add_f32 v6, {f32(1e-5)}, v6")
    a.e("v_cvt_pk_bf16_f32 v7, v6, v6")
    a.e("v_lshlrev_b32 v6, 16, v7")
    a.e("v_sqrt_f32 v6, v6")
    a.e("s_nop 0")
    a.e("v_cvt_pk_bf16_f32 v7, v6, v6")
    a.e("v_lshlrev_b32 v6, 16, v7")
    a.e("v_rcp_f32 v8, v6")
    a.e("s_nop 0")
    for i in range(9):
        x0, x1 = 20 + 2*i, 21 + 2*i
        a.e(f"v_sub_f32 v{x0}, v{x0}, v5")
        a.e(f"v_sub_f32 v{x1}, v{x1}, v5")
        a.e(f"v_cvt_pk_bf16_f32 v7, v{x0}, v{x1}")
        a.e(f"v_lshlrev_b32 v{x0}, 16, v7")
        a.e(f"v_and_b32 v{x1}, s25, v7")
        a.e(f"v_mul_f32 v40, v{x0}, v8")
        a.e(f"v_mul_f32 v41, v{x1}, v8")
        a.e(f"v_fma_f32 v42, -v40, v6, v{x0}")
        a.e(f"v_fma_f32 v43, -v41, v6, v{x1}")
        a.e(f"v_fma_f32 v40, v42, v8, v40")
        a.e(f"v_fma_f32 v41, v43, v8, v41")
        a.e(f"v_cvt_pk_bf16_f32 v{10+i}, v40, v41")
        a.e(f"s_mov_b32 s26, {i*(4096 if M32 else 2048)}")
        a.e(f"buffer_store_dword v{10+i}, v44, s[20:23], s26 offen")
    a.e("s_endpgm")
    a.lab("K0_B")
    a.e("s_cmp_ge_u32 s2, 418")
    a.e("s_cbranch_scc1 K0_C")
    srd(a, 16, 8, 9, 576 * 1152)
    srd(a, 20, 10, 11, 576 * 1152)
    srd_ws(a, 24, 6, OFF_WB, 576 * 9216)
    a.e("s_sub_u32 s28, s2, 256")
    a.e("s_mul_i32 s29, s28, 57")
    a.e("s_lshr_b32 s29, s29, 9")
    a.e("s_mul_i32 s30, s29, 9")
    a.e("s_sub_u32 s30, s28, s30")
    a.e("v_lshrrev_b32 v1, 6, v0")
    a.e("v_and_b32 v2, 63, v0")
    a.e("s_lshl_b32 s29, s29, 2")
    a.e("v_add_u32 v1, s29, v1")
    a.e("s_lshl_b32 s30, s30, 6")
    a.e("v_add_u32 v2, s30, v2")
    a.e("v_mul_u32_u24 v3, 0x480, v2")
    a.e("v_lshl_add_u32 v3, v1, 4, v3")
    a.e("buffer_load_dwordx4 v[8:11], v3, s[16:19], 0 offen")
    a.e("buffer_load_dwordx4 v[12:15], v3, s[20:23], 0 offen")
    a.e("v_mul_u32_u24 v4, 0x12000, v1")
    a.e("v_lshl_add_u32 v4, v2, 2, v4")
    a.e("s_mov_b32 s31, 0x05040100")
    a.e("s_mov_b32 s32, 0x07060302")
    a.e("s_mov_b32 s33, 9216")
    a.e("s_waitcnt vmcnt(0)")
    for i in range(4):
        a.e(f"v_perm_b32 v{16+2*i}, v{12+i}, v{8+i}, s31")
        a.e(f"v_perm_b32 v{17+2*i}, v{12+i}, v{8+i}, s32")
    for i in range(8):
        a.e(f"buffer_store_dword v{16+i}, v4, s[24:27], 0 offen")
        if i < 7: a.e("v_add_u32 v4, s33, v4")
    a.e("s_endpgm")
    a.lab("K0_C")
    srd(a, 16, 12, 13, 576 * 1152)
    srd(a, 20, 14, 15, 576 * 1152)
    srd_ws(a, 24, 6, OFF_CI, 576 * 2304)
    a.e("v_lshrrev_b32 v1, 6, v0")
    a.e("s_nop 0")
    a.e("v_readfirstlane_b32 s29, v1")
    a.e("s_sub_u32 s28, s2, 418")
    a.e("s_lshl_b32 s28, s28, 2")
    a.e("s_add_u32 s28, s28, s29")
    a.e("s_mul_i32 s29, s28, 3641")
    a.e("s_lshr_b32 s29, s29, 16")
    a.e("s_mul_i32 s30, s29, 18")
    a.e("s_sub_u32 s30, s28, s30")
    a.e("v_and_b32 v1, 15, v0")
    a.e("v_bfe_u32 v2, v0, 4, 2")
    a.e("s_lshl_b32 s31, s30, 2")
    a.e("v_add_u32 v2, s31, v2")
    a.e("s_lshl_b32 s31, s29, 4")
    a.e("v_add_u32 v3, s31, v1")
    a.e("v_mul_u32_u24 v3, 0x480, v3")
    a.e("v_lshl_add_u32 v3, v2, 4, v3")
    a.e("buffer_load_dwordx4 v[8:11], v3, s[16:19], 0 offen")
    a.e("buffer_load_dwordx4 v[12:15], v3, s[20:23], 0 offen")
    a.e("s_mul_i32 s31, s29, 36864")
    a.e("v_lshlrev_b32 v4, 9, v2")
    a.e("v_lshl_add_u32 v4, v1, 4, v4")
    a.e("v_add_u32 v4, s31, v4")
    a.e("s_mov_b32 s31, 0x05040100")
    a.e("s_mov_b32 s32, 0x07060302")
    a.e("s_waitcnt vmcnt(0)")
    for i in range(4):
        a.e(f"v_perm_b32 v{16+2*i}, v{12+i}, v{8+i}, s31")
        a.e(f"v_perm_b32 v{17+2*i}, v{12+i}, v{8+i}, s32")
    a.e("buffer_store_dwordx4 v[16:19], v4, s[24:27], 0 offen")
    a.e("buffer_store_dwordx4 v[20:23], v4, s[24:27], 0 offen offset:256")
    a.lab("K0_END")
    a.e("s_endpgm")
    if 'nopf0' in ABL: return
    a.lab("K0_PF")
    a.e("s_load_dwordx4 s[4:7], s[0:1], 80")
    a.e("s_and_b32 s20, s2, 7")
    a.e("s_lshr_b32 s21, s2, 3")
    a.e("s_mul_i32 s20, s20, 1152")
    a.e(f"s_mul_i32 s21, s21, {18*9216}")
    a.e("s_add_u32 s20, s20, s21")
    a.e("s_movk_i32 s22, 2731")
    a.e("s_waitcnt lgkmcnt(0)")
    srd(a, 8, 4, 5, 576 * 9216)
    srd(a, 12, 6, 7, 576 * 9216)
    if 'nopf0' in ABL: a.e("s_endpgm")
    for i in range(2):
        a.e(f"v_add_u32 v1, {256*i}, v0")
        a.e("v_mul_lo_u32 v2, v1, s22")
        a.e("v_lshrrev_b32 v2, 16, v2")
        a.e("v_mul_u32_u24 v3, 24, v2")
        a.e("v_sub_u32 v3, v1, v3")
        a.e("v_mul_u32_u24 v4, 43, v3")
        a.e("v_lshrrev_b32 v4, 8, v4")
        a.e("v_mul_u32_u24 v5, 6, v4")
        a.e("v_sub_u32 v5, v3, v5")
        a.e("v_min_u32 v2, 17, v2")
        a.e("v_mul_u32_u24 v2, 0x2400, v2")
        a.e("v_mul_u32_u24 v4, 288, v4")
        a.e("v_lshl_add_u32 v2, v5, 4, v2")
        a.e("v_add_u32 v2, v2, v4")
        a.e(f"buffer_load_dwordx4 {vr(8+8*i,4)}, v2, s[8:11], s20 offen")
        a.e(f"buffer_load_dwordx4 {vr(12+8*i,4)}, v2, s[12:15], s20 offen")
    a.e("s_waitcnt vmcnt(0)")
    a.e("s_endpgm")

K1_R = 8
K1_STAGE = 12544
K1_UOFF = 6272
def gen_k1(a):
    R = K1_R
    kernel_head(a, "k1_kernel")
    vA = lambda k16: 112 + k16 * 4
    acc = lambda j: 64 + j * 16
    wF = lambda par, j: 40 + (par * 3 + j) * 4
    vLds = [1, 2]; vDma = [3, 4]; vH = 5; vU = 0
    PK = 6
    TMP = 30
    vPF = 31
    st = Stamper(a, 'stamp1', first=80)
    a.e("s_cmp_ge_u32 s2, 256")
    a.e("s_cbranch_scc1 K1_END")
    st()
    a.e("s_load_dwordx4 s[4:7], s[0:1], 80")
    a.e("s_load_dwordx2 s[30:31], s[0:1], 120")
    a.e("s_load_dwordx2 s[28:29], s[0:1], 96")
    a.e("v_lshrrev_b32 v10, 6, v0")
    a.e("s_nop 0")
    a.e("v_readfirstlane_b32 s32, v10")
    a.e("s_and_b32 s33, s2, 7")
    a.e("s_lshr_b32 s34, s2, 3")
    a.e("s_and_b32 s35, s34, 3")
    a.e("s_lshl_b32 s36, s33, 2")
    a.e("s_add_u32 s36, s36, s35")
    a.e("s_lshr_b32 s37, s34, 2")
    a.e("s_lshl_b32 s38, s33, 1")
    a.e("s_add_u32 s38, s38, s35")
    a.e("s_add_u32 s39, s33, 16")
    a.e("s_cmp_lt_u32 s35, 2")
    a.e("s_cselect_b32 s38, s38, s39")
    a.e("s_cselect_b32 s27, 1, 0")
    a.e("s_cmp_eq_u32 s35, 2")
    a.e("s_cselect_b32 s39, 1, 0")
    a.e("s_cmp_lt_u32 s33, 2")
    a.e("s_cselect_b32 s39, s39, 0")
    a.e("s_or_b32 s27, s27, s39")
    a.e("s_min_u32 s38, s38, 17")
    a.e("s_waitcnt lgkmcnt(0)")
    srd_ws(a, 8, 30, OFF_XN, 2048 * 1152)
    srd_ws(a, 16, 30, OFF_H, 2048 * 9216)
    srd_ws(a, 20, 30, OFF_U, 2048 * 4608)
    a.e(f"s_add_u32 s24, s30, {OFF_WB}")
    a.e("s_addc_u32 s25, s31, 0")
    a.e("s_cmp_lg_u32 s27, 0")
    a.e(f"s_cselect_b32 s22, {2048*4608}, 0")
    a.e(f"s_cselect_b32 s26, {576*9216}, 0")
    a.e("s_cmp_lt_u32 s32, 4")
    a.e("s_cselect_b32 s12, s4, s6")
    a.e("s_cselect_b32 s13, s5, s7")
    a.e(f"s_mov_b32 s14, {576*9216}")
    a.e("s_mov_b32 s15, 0x00020000")
    a.e("s_cselect_b32 s44, 0, 64")
    a.e("v_and_b32 v10, 63, v0")
    a.e("v_lshrrev_b32 v11, 4, v10")
    a.e("v_and_b32 v12, 15, v10")
    a.e("s_lshl_b32 s39, s37, 3")
    a.e("s_add_u32 s39, s39, s32")
    a.e("v_lshlrev_b32 v14, 4, v10")
    a.e("s_mul_i32 s40, s39, 36864")
    a.e("s_mul_i32 s41, s36, 288")
    a.e("s_lshl_b32 s45, s38, 7")
    a.e("s_add_u32 s44, s44, s45")
    a.e("v_lshrrev_b32 v16, 1, v11")
    a.e("v_lshlrev_b32 v16, 3, v16")
    a.e("v_bfe_u32 v17, v10, 2, 2")
    a.e("v_add_u32 v16, v16, v17")
    a.e("v_mul_u32_u24 v16, 96, v16")
    a.e("v_and_b32 v17, 3, v10")
    a.e("v_lshl_add_u32 v16, v17, 3, v16")
    a.e("v_and_b32 v17, 1, v11")
    a.e(f"v_mul_u32_u24 v17, {K1_UOFF}, v17")
    a.e(f"v_add_u32 v{vLds[0]}, v16, v17")
    a.e(f"v_add_u32 v{vLds[1]}, {4*K1_STAGE}, v{vLds[0]}")
    a.e("s_and_b32 s45, s32, 3")
    a.e("s_mul_i32 s46, s45, 96")
    for i in range(2):
        a.e(f"v_add_u32 v16, s46, v10")
        if i: a.e(f"v_add_u32 v16, {64*i}, v16")
        a.e("v_mul_u32_u24 v17, 171, v16")
        a.e("v_lshrrev_b32 v17, 10, v17")
        a.e("v_mul_u32_u24 v18, 6, v17")
        a.e("v_sub_u32 v18, v16, v18")
        a.e("v_and_b32 v17, 63, v17")
        a.e("v_mul_u32_u24 v19, 0x2400, v17")
        a.e(f"v_lshl_add_u32 v{vDma[i]}, v18, 4, v19")
    a.e("s_lshr_b32 s47, s32, 2")
    a.e(f"s_mul_i32 s47, s47, {K1_UOFF}")
    a.e("s_mul_i32 s48, s45, 1536")
    a.e("s_add_u32 s47, s47, s48")
    a.e("s_mul_i32 s42, s39, 294912")
    a.e("s_mul_i32 s43, s36, 4608")
    a.e("s_add_u32 s42, s42, s43")
    a.e("v_and_b32 v17, 1, v11")
    a.e("s_mov_b32 s43, 147456")
    a.e("v_mul_lo_u32 v16, v17, s43")
    a.e("v_lshl_add_u32 v16, v12, 4, v16")
    a.e("v_lshrrev_b32 v18, 5, v10")
    a.e("v_lshl_add_u32 v16, v18, 3, v16")
    a.e(f"v_add_u32 v{vH}, s42, v16")
    a.e("s_mul_i32 s42, s39, 144")
    a.e("s_lshl_b32 s43, s38, 2")
    a.e("s_add_u32 s42, s42, s43")
    a.e("s_lshl_b32 s42, s42, 10")
    a.e("v_mul_u32_u24 v16, 0x12000, v17")
    a.e("v_lshl_add_u32 v16, v12, 4, v16")
    a.e("v_lshl_add_u32 v16, v18, 8, v16")
    a.e(f"v_add_u32 v{vU}, s42, v16")
    a.e("s_mov_b32 s50, 0xffff0000")
    srd(a, 4, 28, 29, 4608 * 1152)
    a.e("s_lshr_b32 s27, s33, 1")
    a.e(f"s_mul_i32 s27, s27, {1152*1152}")
    a.e("s_mul_i32 s56, s34, 41472")
    a.e("s_add_u32 s27, s27, s56")
    a.e("s_mul_i32 s56, s32, 5184")
    a.e("s_add_u32 s27, s27, s56")
    a.e("s_lshl_b32 s57, s32, 10")
    a.e("v_lshlrev_b32 v31, 4, v10")

    vm = Cnt("vm", 63); lg = Cnt("lgkm", 15)
    NST = 36
    a.e("s_lshl_b32 s53, s35, 1")
    a.e("s_add_u32 s53, s53, s37")
    a.e("s_cmp_ge_u32 s53, 9")
    a.e("s_cselect_b32 s54, 9, 0")
    a.e("s_sub_u32 s53, s53, s54")
    if 'norot' in ABL: a.e("s_mov_b32 s53, 0")
    for S in range(9):
        a.e(f"s_add_u32 s54, s53, {S}")
        a.e("s_cmp_ge_u32 s54, 9")
        a.e("s_cselect_b32 s55, 9, 0")
        a.e("s_sub_u32 s54, s54, s55")
        a.e(f"s_mul_i32 s{60+S}, s54, {64*9216}")
        a.e(f"s_lshl_b32 s{70+S}, s54, 12")
        a.e(f"s_add_u32 s{70+S}, s{70+S}, s40")
    def dma_ops(S):
        ops = []
        for i in range(2):
            L = []
            if S == 27 and i == 0:
                L += ["s_mov_b32 s12, s24", "s_mov_b32 s13, s25", "s_mov_b32 s14, s26"]
            if S < 27:
                p, stg = divmod(S, 9)
                L.append(f"s_add_u32 s49, s41, s{60+stg}")
                if p: L.append(f"s_add_u32 s49, s49, {p*96}")
            else:
                L.append(f"s_add_u32 s49, s44, s{60+S-27}")
            if i == 1: L.append("s_mov_b32 exec_hi, 0")
            L.append(f"s_add_u32 m0, s47, {(S % R)*K1_STAGE + i*1024}")
            L.append("s_nop 0")
            L.append(f"buffer_load_dwordx4 v{vDma[i]}, s[12:15], s49 offen lds")
            if i == 1: L.append("s_mov_b32 exec_hi, -1")
            ops.append((("D", S), L))
        return ops
    def aload_ops(S):
        ops = []
        for q in range(4):
            ops.append((("A", S * 4 + q), [f"buffer_load_dwordx4 {vr(vA(S*4+q),4)}, v14, s[8:11], s{70+S} offen offset:{q*1024}"]))
        return ops
    def emit_op(op):
        tag, L = op
        for x in L: a.e(x)
        vm.issue(tag)
    for S in range(2):
        for op in dma_ops(S) + aload_ops(S): emit_op(op)
    next_dma = 2

    def rd(gk, j):
        S, q = divmod(gk, 4)
        base = (S % R) * K1_STAGE + q * 16 * 96 + j * 32
        vb = vLds[0]
        if (S % R) >= 4:
            base -= 4 * K1_STAGE; vb = vLds[1]
        w = wF(gk & 1, j)
        a.e(f"ds_read_b64_tr_b16 {vr(w,2)}, v{vb} offset:{base}")
        a.e(f"ds_read_b64_tr_b16 {vr(w+2,2)}, v{vb} offset:{base+384}")
        lg.issue((gk, j)); lg.issue((gk, j))

    def epi_stream(p):
        out = []
        t = TMP
        for j in range(3):
            for ap in range(2):
                pg = PK + j * 8 + ap * 2; pu = PK + j * 8 + 4 + ap * 2
                for h in range(2):
                    out += [
                        f"v_lshlrev_b32 v{t+2}, 16, v{pg+h}",
                        f"v_and_b32 v{t+3}, s50, v{pg+h}",
                        f"v_mul_f32 v{t+4}, {f32(-LOG2E)}, v{t+2}",
                        f"v_mul_f32 v{t+5}, {f32(-LOG2E)}, v{t+3}",
                        f"v_exp_f32 v{t+4}, v{t+4}",
                        f"v_exp_f32 v{t+5}, v{t+5}",
                        f"v_lshlrev_b32 v{t+6}, 16, v{pu+h}",
                        f"v_add_f32 v{t+4}, 1.0, v{t+4}",
                        f"v_add_f32 v{t+5}, 1.0, v{t+5}",
                        f"v_rcp_f32 v{t+4}, v{t+4}",
                        f"v_rcp_f32 v{t+5}, v{t+5}",
                        f"v_and_b32 v{t+7}, s50, v{pu+h}",
                        f"v_mul_f32 v{t+4}, v{t+2}, v{t+4}",
                        f"v_mul_f32 v{t+5}, v{t+3}, v{t+5}",
                        f"v_cvt_pk_bf16_f32 v{t}, v{t+4}, v{t+5}",
                        f"v_lshlrev_b32 v{t+4}, 16, v{t}",
                        f"v_and_b32 v{t+5}, s50, v{t}",
                        f"v_mul_f32 v{t+4}, v{t+4}, v{t+6}",
                        f"v_mul_f32 v{t+5}, v{t+5}, v{t+7}",
                        f"v_cvt_pk_bf16_f32 v{t+8+h}, v{t+4}, v{t+5}",
                    ]
                out.append(("ST", [f"s_movk_i32 s52, {p*1536}",
                            f"buffer_store_dwordx2 {vr(t+8,2)}, v{vH}, s[16:19], s52 offen offset:{j*512+ap*256}"]))
        return out
    def emit_fill(x):
        if isinstance(x, tuple): emit_op(x)
        else: a.e(x)

    def ntile(p): return 3 if p < 3 else 2
    NG = NST * 4
    fill = []
    for gk in range(NG):
        S, q = divmod(gk, 4)
        p = S // 9; k16 = (S % 9) * 4 + q
        if q == 0:
            if S % 2 == 0: st(lg)
            n = vm.need({("D", S), ("D", S + 1)})
            if n is not None: a.e(f"s_waitcnt vmcnt({n})")
            a.e("s_barrier")
            if gk == 0:
                for g2 in range(2):
                    for j in range(3): rd(g2, j)
            vq = []
            if p == 0 and S + 2 < 9: vq += aload_ops(S + 2)
            nd = 0
            while next_dma < NST and next_dma <= S + R - 1 and nd < 2:
                d = dma_ops(next_dma)
                vq = (d + vq) if nd == 0 else (vq + d)
                next_dma += 1; nd += 1
            if 19 <= S <= 24 and 'nopf' not in ABL:
                vq.append(("PF", [f"s_add_u32 s56, s27, {(S-19)*1024}", f"s_add_u32 m0, s57, {K1_R*12544}", "s_nop 0",
                                  f"buffer_load_dwordx4 v{vPF}, s[4:7], s56 offen lds"]))
            nmf = 4 * ntile(p)
            slots = {}
            for z in range(len(vq)):
                slots.setdefault(1 + (z * (nmf - 1)) // len(vq), []).append(vq[z])
            vsched = sorted(slots.items())
            mf = 0
        if p == 0:
            n = vm.need({("A", k16)})
            if n is not None: a.e(f"s_waitcnt vmcnt({n})")
        for j in range(ntile(p)):
            n = lg.need({(gk, j)})
            if n is not None: a.e(f"s_waitcnt lgkmcnt({n})")
            c = "0" if k16 == 0 else vr(acc(j), 16)
            a.e(f"v_mfma_f32_32x32x16_bf16 {vr(acc(j),16)}, {vr(wF(gk&1,j),4)}, {vr(vA(k16),4)}, {c}")
            mf += 1
            g2 = gk + 2
            if g2 < NG and j < ntile(g2 // 36): rd(g2, j)
            while vsched and vsched[0][0] <= mf:
                for op in vsched.pop(0)[1]: emit_op(op)
            if k16 >= 1:
                for _ in range(3 if p < 3 else 4):
                    if fill: emit_fill(fill.pop(0))
        if q == 3: assert not vsched
        if k16 == 35:
            while fill: emit_fill(fill.pop(0))
            a.e("s_nop 7")
            a.e("s_nop 4")
            if p < 3:
                for j in range(3):
                    for z in range(8):
                        a.e(f"v_cvt_pk_bf16_f32 v{PK+j*8+z}, v{acc(j)+2*z}, v{acc(j)+2*z+1}")
                fill = epi_stream(p)
            else:
                for j in range(2):
                    for ag in range(4):
                        a.e(f"buffer_store_dwordx4 {vr(acc(j)+4*ag,4)}, v{vU}, s[20:23], 0 offen offset:{((ag>>1)*2+j)*1024+(ag&1)*512}")
    st.dump()
    a.lab("K1_END")
    a.e("s_endpgm")

def gen_k1_16(a):
    K1_STAGE = 12288
    R = K1_R
    kernel_head(a, "k1_kernel")
    vA = lambda rt, ks: 112 + (rt * 18 + ks) * 4
    accG = lambda rt, j: 64 + (rt * 3 + j) * 4
    accU = lambda rt, j: 88 + (rt * 3 + j) * 4
    wF = lambda m, j: 40 + (m * 3 + j) * 4
    vLds = [1, 2]; vDma = [3, 4]; vH = 5; vU = 0
    PK = 6
    TMP = 30
    vPF = 31
    st = Stamper(a, 'stamp1', first=56 if False else 80)
    a.e("s_cmp_ge_u32 s2, 256")
    a.e("s_cbranch_scc1 K1_END")
    st()
    a.e("s_load_dwordx4 s[4:7], s[0:1], 80")
    a.e("s_load_dwordx2 s[30:31], s[0:1], 120")
    a.e("s_load_dwordx2 s[28:29], s[0:1], 96")
    a.e("v_lshrrev_b32 v10, 6, v0")
    a.e("s_nop 0")
    a.e("v_readfirstlane_b32 s32, v10")
    a.e("s_and_b32 s33, s2, 7")
    a.e("s_lshr_b32 s34, s2, 3")
    a.e("s_and_b32 s35, s34, 3")
    a.e("s_lshl_b32 s36, s33, 2")
    a.e("s_add_u32 s36, s36, s35")
    a.e("s_lshr_b32 s37, s34, 2")
    a.e("s_mul_i32 s38, s33, 3")
    a.e("s_min_u32 s39, s35, 2")
    a.e("s_add_u32 s38, s38, s39")
    a.e("s_waitcnt lgkmcnt(0)")
    srd_ws(a, 8, 30, OFF_XN, 2048 * 1152)
    srd_ws(a, 16, 30, OFF_H, 2048 * 9216)
    srd_ws(a, 20, 30, OFF_U, 2048 * 4608)
    a.e("s_cmp_lt_u32 s35, 3")
    a.e(f"s_cselect_b32 s22, {2048*4608}, 0")
    a.e(f"s_add_u32 s24, s30, {OFF_WB}")
    a.e("s_addc_u32 s25, s31, 0")
    a.e("s_cmp_lt_u32 s35, 3")
    a.e(f"s_cselect_b32 s26, {576*9216}, 0")
    a.e("s_cmp_lt_u32 s32, 4")
    a.e("s_cselect_b32 s26, s26, 0")
    a.e("s_cselect_b32 s12, s4, s6")
    a.e("s_cselect_b32 s13, s5, s7")
    a.e(f"s_mov_b32 s14, {576*9216}")
    a.e("s_mov_b32 s15, 0x00020000")
    a.e("v_and_b32 v10, 63, v0")
    a.e("v_lshrrev_b32 v11, 4, v10")
    a.e("v_and_b32 v12, 15, v10")
    a.e("s_lshl_b32 s39, s37, 4")
    a.e("s_lshl_b32 s40, s32, 1")
    a.e("s_add_u32 s39, s39, s40")
    a.e("v_lshlrev_b32 v14, 4, v10")
    a.e("s_mul_i32 s40, s39, 18432")
    a.e("s_mul_i32 s41, s36, 288")
    a.e("s_mul_i32 s44, s38, 96")
    a.e("v_lshrrev_b32 v16, 1, v11")
    a.e("v_and_b32 v17, 1, v11")
    a.e("v_lshlrev_b32 v16, 4, v16")
    a.e("v_lshl_add_u32 v16, v17, 2, v16")
    a.e("v_bfe_u32 v17, v10, 2, 2")
    a.e("v_add_u32 v16, v16, v17")
    a.e("v_mul_u32_u24 v16, 96, v16")
    a.e("v_and_b32 v17, 3, v10")
    a.e(f"v_lshl_add_u32 v{vLds[0]}, v17, 3, v16")
    a.e(f"v_add_u32 v{vLds[1]}, {4*K1_STAGE}, v{vLds[0]}")
    a.e("s_and_b32 s45, s32, 3")
    a.e("s_mul_i32 s46, s45, 96")
    for i in range(2):
        a.e(f"v_add_u32 v16, s46, v10")
        if i: a.e(f"v_add_u32 v16, {64*i}, v16")
        a.e("v_mul_u32_u24 v17, 171, v16")
        a.e("v_lshrrev_b32 v17, 10, v17")
        a.e("v_mul_u32_u24 v18, 6, v17")
        a.e("v_sub_u32 v18, v16, v18")
        a.e("v_and_b32 v19, 0x33, v17")
        a.e("v_bfe_u32 v20, v17, 2, 1")
        a.e("v_lshl_add_u32 v19, v20, 3, v19")
        a.e("v_bfe_u32 v20, v17, 3, 1")
        a.e("v_lshl_add_u32 v19, v20, 2, v19")
        a.e("v_mul_u32_u24 v19, 0x2400, v19")
        a.e(f"v_lshl_add_u32 v{vDma[i]}, v18, 4, v19")
    a.e("s_lshr_b32 s47, s32, 2")
    a.e("s_mul_i32 s47, s47, 6144")
    a.e("s_mul_i32 s48, s45, 1536")
    a.e("s_add_u32 s47, s47, s48")
    a.e("s_mul_i32 s42, s39, 147456")
    a.e("s_mul_i32 s43, s36, 4608")
    a.e("s_add_u32 s42, s42, s43")
    a.e("v_lshrrev_b32 v16, 1, v11")
    a.e("v_lshlrev_b32 v16, 8, v16")
    a.e("v_lshl_add_u32 v16, v12, 4, v16")
    a.e("v_and_b32 v17, 1, v11")
    a.e("v_lshl_add_u32 v16, v17, 3, v16")
    a.e(f"v_add_u32 v{vH}, s42, v16")
    a.e("s_mul_i32 s42, s39, 72")
    a.e("s_mul_i32 s43, s38, 3")
    a.e("s_add_u32 s42, s42, s43")
    a.e("s_lshl_b32 s42, s42, 10")
    a.e(f"v_add_u32 v{vU}, s42, v14")
    a.e("s_mov_b32 s50, 0xffff0000")
    a.e("s_mov_b32 s51, 73728")
    srd(a, 4, 28, 29, 4608 * 1152)
    a.e("s_lshr_b32 s27, s33, 1")
    a.e(f"s_mul_i32 s27, s27, {1152*1152}")
    a.e("s_mul_i32 s56, s34, 41472")
    a.e("s_add_u32 s27, s27, s56")
    a.e("s_mul_i32 s56, s32, 5184")
    a.e("s_add_u32 s27, s27, s56")
    a.e("s_lshl_b32 s57, s32, 10")
    a.e("v_lshlrev_b32 v31, 4, v10")

    vm = Cnt("vm", 63); lg = Cnt("lgkm", 15)
    NST = 36
    a.e("s_lshl_b32 s53, s35, 1")
    a.e("s_add_u32 s53, s53, s37")
    a.e("s_cmp_ge_u32 s53, 9")
    a.e("s_cselect_b32 s54, 9, 0")
    a.e("s_sub_u32 s53, s53, s54")
    if 'norot' in ABL: a.e("s_mov_b32 s53, 0")
    for S in range(9):
        a.e(f"s_add_u32 s54, s53, {S}")
        a.e("s_cmp_ge_u32 s54, 9")
        a.e("s_cselect_b32 s55, 9, 0")
        a.e("s_sub_u32 s54, s54, s55")
        a.e(f"s_mul_i32 s{60+S}, s54, {64*9216}")
        a.e(f"s_lshl_b32 s{70+S}, s54, 11")
        a.e(f"s_add_u32 s{70+S}, s{70+S}, s40")
    def dma_ops(S):
        ops = []
        for i in range(2):
            L = []
            if S == 27 and i == 0:
                L += ["s_mov_b32 s12, s24", "s_mov_b32 s13, s25", "s_mov_b32 s14, s26"]
            if S < 27:
                p, stg = divmod(S, 9)
                L.append(f"s_add_u32 s49, s41, s{60+stg}")
                if p: L.append(f"s_add_u32 s49, s49, {p*96}")
            else:
                L.append(f"s_add_u32 s49, s44, s{60+S-27}")
            if i == 1: L.append("s_mov_b32 exec_hi, 0")
            L.append(f"s_add_u32 m0, s47, {(S % R)*K1_STAGE + i*1024}")
            L.append("s_nop 0")
            L.append(f"buffer_load_dwordx4 v{vDma[i]}, s[12:15], s49 offen lds")
            if i == 1: L.append("s_mov_b32 exec_hi, -1")
            ops.append((("D", S), L))
        return ops
    def aload_ops(ks):
        ops = []
        for rt in range(2):
            L = [f"s_add_u32 s49, s{70+ks//2}, {(rt*18+(ks&1))*1024}",
                 f"buffer_load_dwordx4 {vr(vA(rt,ks),4)}, v14, s[8:11], s49 offen"]
            ops.append((("A", ks), L))
        return ops
    def emit_op(op):
        tag, L = op
        for x in L: a.e(x)
        vm.issue(tag)
    for S in range(2):
        for op in dma_ops(S) + aload_ops(2 * S) + aload_ops(2 * S + 1): emit_op(op)
    next_dma = 2

    def rd(S, half, m, j):
        base = (S % R) * K1_STAGE + m * 6144 + half * 3072 + j * 32
        vb = vLds[0]
        if (S % R) >= 4:
            base -= 4 * K1_STAGE; vb = vLds[1]
        w = wF(m, j)
        a.e(f"ds_read_b64_tr_b16 {vr(w,2)}, v{vb} offset:{base}")
        a.e(f"ds_read_b64_tr_b16 {vr(w+2,2)}, v{vb} offset:{base+768}")
        lg.issue((m, j)); lg.issue((m, j))

    def epi_stream(p, t=None, pk=None):
        out = []
        t = TMP
        for rt in range(2):
            for j in range(3):
                pg = PK + (rt * 3 + j) * 2; pu = PK + 12 + (rt * 3 + j) * 2
                for h in range(2):
                    out += [
                        f"v_lshlrev_b32 v{t+2}, 16, v{pg+h}",
                        f"v_and_b32 v{t+3}, s50, v{pg+h}",
                        f"v_mul_f32 v{t+4}, {f32(-LOG2E)}, v{t+2}",
                        f"v_mul_f32 v{t+5}, {f32(-LOG2E)}, v{t+3}",
                        f"v_exp_f32 v{t+4}, v{t+4}",
                        f"v_exp_f32 v{t+5}, v{t+5}",
                        f"v_lshlrev_b32 v{t+6}, 16, v{pu+h}",
                        f"v_add_f32 v{t+4}, 1.0, v{t+4}",
                        f"v_add_f32 v{t+5}, 1.0, v{t+5}",
                        f"v_rcp_f32 v{t+4}, v{t+4}",
                        f"v_rcp_f32 v{t+5}, v{t+5}",
                        f"v_and_b32 v{t+7}, s50, v{pu+h}",
                        f"v_mul_f32 v{t+4}, v{t+2}, v{t+4}",
                        f"v_mul_f32 v{t+5}, v{t+3}, v{t+5}",
                        f"v_cvt_pk_bf16_f32 v{t}, v{t+4}, v{t+5}",
                        f"v_lshlrev_b32 v{t+4}, 16, v{t}",
                        f"v_and_b32 v{t+5}, s50, v{t}",
                        f"v_mul_f32 v{t+4}, v{t+4}, v{t+6}",
                        f"v_mul_f32 v{t+5}, v{t+5}, v{t+7}",
                        f"v_cvt_pk_bf16_f32 v{t+8+h}, v{t+4}, v{t+5}",
                    ]
                out.append(("ST", [f"s_mov_b32 s52, {rt*147456 + p*1536}",
                            f"buffer_store_dwordx2 {vr(t+8,2)}, v{vH}, s[16:19], s52 offen offset:{j*512}"]))
        return out
    def emit_fill(x):
        if isinstance(x, tuple): emit_op(x)
        else: a.e(x)

    steps = []
    for S in range(NST):
        for half in range(2):
            steps.append((S, half, S // 9, (S % 9) * 2 + half))
    def mats(p): return (0, 1) if p < 3 else (0,)
    fill = []
    vq = []
    for idx, (S, half, p, ks) in enumerate(steps):
        if half == 0:
            assert not vq
            if S % 2 == 0: st(lg)
            n = vm.need({("D", S), ("D", S + 1)})
            if n is not None: a.e(f"s_waitcnt vmcnt({n})")
            a.e("s_barrier")
            if idx == 0:
                for m in mats(p):
                    for j in range(3): rd(S, 0, m, j)
            if p == 0 and S + 2 < 9:
                vq += aload_ops(2 * (S + 2)) + aload_ops(2 * (S + 2) + 1)
            nd = 0
            while next_dma < NST and next_dma <= S + R - 1 and nd < 2:
                d = dma_ops(next_dma)
                if nd == 0: vq = d + vq
                else: vq = vq + d
                next_dma += 1; nd += 1
            if 19 <= S <= 24 and 'nopf' not in ABL:
                vq.append(("PF", [f"s_add_u32 s56, s27, {(S-19)*1024}", f"s_add_u32 m0, s57, {K1_R*12544}", "s_nop 0",
                                  f"buffer_load_dwordx4 v{vPF}, s[4:7], s56 offen lds"]))
            nmf = 24 if p < 3 else 12
            slots = {}
            for q in range(len(vq)):
                slots.setdefault(1 + (q * (nmf - 2)) // len(vq), []).append(q)
            vsched = [(k, [vq[q] for q in v]) for k, v in sorted(slots.items())]
            vq = []
            mf = 0
        if p == 0:
            n = vm.need({("A", ks)})
            if n is not None: a.e(f"s_waitcnt vmcnt({n})")
        nxt = steps[idx + 1] if idx + 1 < len(steps) else None
        for m in mats(p):
            for j in range(3):
                n = lg.need({(m, j)})
                if n is not None: a.e(f"s_waitcnt lgkmcnt({n})")
                for rt in range(2):
                    acc = (accG if m == 0 else accU)(rt, j)
                    c = "0" if ks == 0 else vr(acc, 4)
                    a.e(f"v_mfma_f32_16x16x32_bf16 {vr(acc,4)}, {vr(wF(m,j),4)}, {vr(vA(rt,ks),4)}, {c}")
                    mf += 1
                    while vsched and vsched[0][0] <= mf:
                        for op in vsched.pop(0)[1]: emit_op(op)
                    if ks >= 1 or p == 3:
                        nf = (2 if rt == 0 else 1) if p < 3 else 3
                        for _ in range(nf):
                            if fill: emit_fill(fill.pop(0))
                if nxt is not None and m in mats(nxt[2]):
                    rd(nxt[0], nxt[1], m, j)
        if half == 1: assert not vsched
        if ks == 17:
            while fill: emit_fill(fill.pop(0))
            a.e("s_nop 7")
            a.e("s_nop 1")
            if p < 3:
                for rt in range(2):
                    for j in range(3):
                        for h in range(2):
                            a.e(f"v_cvt_pk_bf16_f32 v{PK+(rt*3+j)*2+h}, v{accG(rt,j)+2*h}, v{accG(rt,j)+2*h+1}")
                            a.e(f"v_cvt_pk_bf16_f32 v{PK+12+(rt*3+j)*2+h}, v{accU(rt,j)+2*h}, v{accU(rt,j)+2*h+1}")
                fill = epi_stream(p)
            else:
                for rt in range(2):
                    for j in range(3):
                        so = "0" if rt == 0 else "s51"
                        a.e(f"buffer_store_dwordx4 {vr(accG(rt,j),4)}, v{vU}, s[20:23], {so} offen offset:{j*1024}")
    st.dump()
    a.lab("K1_END")
    a.e("s_endpgm")

def main():
    a = Asm()
    hdr = open(f"cdna_kernels/{NAME}.s.ref").read().split("\n")
    for l in hdr:
        if l.startswith("; @launch") or l.startswith("; Override") or l.startswith("; grid=ceil"): continue
        if not l.startswith(";"): break
        a.raw(l)
    import gen2
    launches = [("k0_kernel", 580 if 'nopf0' in ABL else 836, 256, 0), ("k1_kernel", 256, 512, K1_R * K1_STAGE + 8192)] + gen2.launches()
    for k, g, b, l in launches:
        a.raw(f"; @launch kernel={k} grid=({g},1,1) block=({b},1,1) lds={l}")
    a.raw('.amdgcn_target "amdgcn-amd-amdhsa--gfx950"')
    a.raw(".text")
    a.sc1 = 'k0sc1' in ABL
    gen_k0(a)
    a.sc1 = True
    (gen_k1 if M32 else gen_k1_16)(a)
    kds = [kd("k0_kernel", 64), kd("k1_kernel", 256, 102)]
    kds += gen2.gen(a)
    a.raw('.section .rodata,"a"')
    for k in kds: a.raw(k)
    out = sys.argv[1] if len(sys.argv) > 1 else f"cdna_kernels/{NAME}.s"
    open(out, "w").write("\n".join(a.L) + "\n")

if __name__ == "__main__":
    main()
```

```python
from common import *

K2_R = 4
K2_STAGE = 18432
K2_NSCAN = 144
def launches():
    return [("k2_kernel", 256 + K2_NSCAN, 256, K2_R * K2_STAGE), ("k3_kernel", 256, 256, 73728)]

def cmul(a, dr, di, ar, ai, br, bi, t):
    a.e(f"v_mul_f32 v{t}, v{ai}, v{bi}")
    a.e(f"v_mul_f32 v{t+1}, v{ar}, v{bi}")
    a.e(f"v_fma_f32 v{t}, v{ar}, v{br}, -v{t}")
    a.e(f"v_fma_f32 v{di}, v{ai}, v{br}, v{t+1}")
    a.e(f"v_mov_b32 v{dr}, v{t}")

def gen_k2(a):
    R = K2_R
    kernel_head(a, "k2_kernel")
    st = Stamper(a, 'stamp2', first=62)
    a.e(f"s_cmp_ge_u32 s2, {256+K2_NSCAN}")
    a.e("s_cbranch_scc1 K2_END")
    st()
    a.e("s_load_dwordx2 s[4:5], s[0:1], 96")
    a.e("s_load_dwordx2 s[30:31], s[0:1], 120")
    a.e("s_load_dwordx4 s[52:55], s[0:1], 8")
    a.e("s_load_dwordx2 s[56:57], s[0:1], 56")
    a.e("v_lshrrev_b32 v12, 6, v0")
    a.e("s_nop 0")
    a.e("v_readfirstlane_b32 s32, v12")
    if 'scanlast' in ABL:
        a.e("s_cmp_ge_u32 s2, 256")
        a.e("s_cbranch_scc1 K2_SCAN")
    else:
        a.e(f"s_cmp_lt_u32 s2, {K2_NSCAN}")
        a.e("s_cbranch_scc1 K2_SCAN")
        a.e(f"s_sub_u32 s2, s2, {K2_NSCAN}")
    acc = lambda rt, j: 184 + (rt * 9 + j) * 4
    wF = lambda b, j: 112 + (b * 9 + j) * 4
    HD = 8
    hF = lambda slot, rt: 48 + (slot * 2 + rt) * 4
    vLds = [1, 2]; vDma = [3, 4, 5, 6, 7]; vL16 = 8
    a.e("s_and_b32 s33, s2, 7")
    a.e("s_lshr_b32 s34, s2, 3")
    a.e("s_lshr_b32 s35, s33, 1")
    a.e("s_and_b32 s36, s33, 1")
    a.e("s_lshl_b32 s36, s36, 3")
    a.e("s_lshr_b32 s37, s34, 2")
    a.e("s_add_u32 s36, s36, s37")
    a.e("s_and_b32 s37, s34, 3")
    a.e("s_waitcnt lgkmcnt(0)")
    srd(a, 12, 4, 5, 4608 * 1152)
    srd_ws(a, 8, 30, OFF_H, 2048 * 9216)
    srd_ws(a, 16, 30, OFF_PART, 4 * 2048 * 2304)
    a.e("v_and_b32 v12, 63, v0")
    a.e("v_lshrrev_b32 v13, 4, v12")
    a.e(f"v_lshlrev_b32 v{vL16}, 4, v12")
    a.e("s_lshl_b32 s39, s36, 3")
    a.e("s_lshl_b32 s40, s32, 1")
    a.e("s_add_u32 s39, s39, s40")
    a.e("s_mul_i32 s41, s39, 144")
    a.e("s_mul_i32 s42, s35, 36")
    a.e("s_add_u32 s41, s41, s42")
    a.e("s_lshl_b32 s41, s41, 10")
    a.e("s_lshl_b32 s43, s35, 7")
    a.e("s_add_u32 s43, s43, s39")
    a.e("s_mul_i32 s43, s43, 36")
    a.e("s_mul_i32 s44, s37, 9")
    a.e("s_add_u32 s43, s43, s44")
    a.e("s_lshl_b32 s43, s43, 10")
    a.e("v_lshrrev_b32 v16, 1, v13")
    a.e("v_and_b32 v17, 1, v13")
    a.e("v_lshlrev_b32 v16, 4, v16")
    a.e("v_lshl_add_u32 v16, v17, 2, v16")
    a.e("v_bfe_u32 v17, v12, 2, 2")
    a.e("v_add_u32 v16, v16, v17")
    a.e("v_mul_u32_u24 v16, 288, v16")
    a.e("v_and_b32 v17, 3, v12")
    a.e(f"v_lshl_add_u32 v{vLds[0]}, v17, 3, v16")
    a.e(f"v_add_u32 v{vLds[1]}, {2*K2_STAGE}, v{vLds[0]}")
    a.e("s_mul_i32 s46, s32, 288")
    a.e("s_movk_i32 s45, 3641")
    for i in range(5):
        a.e(f"v_add_u32 v16, s46, v12")
        if i: a.e(f"v_add_u32 v16, {64*i}, v16")
        a.e("v_mul_lo_u32 v17, v16, s45")
        a.e("v_lshrrev_b32 v17, 16, v17")
        a.e("v_mul_u32_u24 v18, 18, v17")
        a.e("v_sub_u32 v18, v16, v18")
        a.e("v_and_b32 v19, 0x33, v17")
        a.e("v_bfe_u32 v20, v17, 2, 1")
        a.e("v_lshl_add_u32 v19, v20, 3, v19")
        a.e("v_bfe_u32 v20, v17, 3, 1")
        a.e("v_lshl_add_u32 v19, v20, 2, v19")
        a.e("v_mul_u32_u24 v19, 0x480, v19")
        a.e(f"v_lshl_add_u32 v{vDma[i]}, v18, 4, v19")
    a.e("s_mul_i32 s47, s32, 4608")
    a.e(f"s_mul_i32 s48, s35, {1152*1152}")
    a.e("s_mul_i32 s49, s37, 288")
    a.e("s_add_u32 s48, s48, s49")
    vm = Cnt("vm", 63); lg = Cnt("lgkm", 15)
    NST = 18
    a.e("s_lshr_b32 s58, s34, 2")
    a.e("s_lshl_b32 s58, s58, 1")
    a.e("s_mul_i32 s59, s37, 5")
    a.e("s_add_u32 s58, s58, s59")
    a.e("s_cmp_ge_u32 s58, 18")
    a.e("s_cselect_b32 s59, 18, 0")
    a.e("s_sub_u32 s58, s58, s59")
    if 'norot' in ABL: a.e("s_mov_b32 s58, 0")
    def rotS(S, dst):
        a.e(f"s_add_u32 s{dst}, s58, {S}")
        a.e(f"s_cmp_ge_u32 s{dst}, 18")
        a.e(f"s_cselect_b32 s59, 18, 0")
        a.e(f"s_sub_u32 s{dst}, s{dst}, s59")
    if 'k2unroll' in ABL:
        def rotL(S, dst):
            return [f"s_add_u32 s{dst}, s58, {S}", f"s_cmp_ge_u32 s{dst}, 18", f"s_cselect_b32 s59, 18, 0", f"s_sub_u32 s{dst}, s{dst}, s59"]
        def dma_ops(S):
            ops = []
            for i in range(5):
                L = []
                if i == 0:
                    L += rotL(S, 57) + [f"s_mul_i32 s57, s57, {64*1152}", "s_add_u32 s49, s48, s57"]
                if i == 4: L.append("s_mov_b32 exec_hi, 0")
                L += [f"s_add_u32 m0, s47, {(S % R)*K2_STAGE + i*1024}", "s_nop 0",
                      f"buffer_load_dwordx4 v{vDma[i]}, s[12:15], s49 offen lds"]
                if i == 4: L.append("s_mov_b32 exec_hi, -1")
                ops.append((("D", S), L))
            return ops
        def hload_ops(kk):
            ops = []
            for rt in range(2):
                L = []
                if rt == 0:
                    L += rotL(kk // 2, 56) + ["s_lshl_b32 s56, s56, 11", "s_add_u32 s56, s56, s41"]
                L += [f"s_add_u32 s50, s56, {(rt*144+(kk&1))*1024}",
                      f"buffer_load_dwordx4 {vr(hF(kk % HD, rt),4)}, v{vL16}, s[8:11], s50 offen"]
                ops.append((("H", kk), L))
            return ops
        def emit_op(op):
            for x in op[1]: a.e(x)
            vm.issue(op[0])
        for op in dma_ops(0) + hload_ops(0) + hload_ops(1) + dma_ops(1) + hload_ops(2) + hload_ops(3): emit_op(op)
        next_dma = 2; next_h = 4
        def rd(kk, j):
            S, half = divmod(kk, 2)
            base = (S % R) * K2_STAGE + half * 32 * 288 + j * 32
            vb = vLds[0]
            if (S % R) >= 2:
                base -= 2 * K2_STAGE; vb = vLds[1]
            w = wF(kk & 1, j)
            a.e(f"ds_read_b64_tr_b16 {vr(w,2)}, v{vb} offset:{base}")
            a.e(f"ds_read_b64_tr_b16 {vr(w+2,2)}, v{vb} offset:{base+8*288}")
            lg.issue((kk, j)); lg.issue((kk, j))
        NK = 36
        for kk in range(NK):
            S, half = divmod(kk, 2)
            if half == 0:
                st(lg)
                n = vm.need({("D", S), ("D", S + 1)})
                if n is not None: a.e(f"s_waitcnt vmcnt({n})")
                a.e("s_barrier")
                if kk == 0:
                    for j in range(9): rd(0, j)
            vq = []
            nh = 0
            while next_h < NK and next_h <= kk - 1 + HD and nh < 2:
                vq += hload_ops(next_h); next_h += 1; nh += 1
            if next_dma < NST and next_dma <= S + R - 1 and (half == 0 or S == 0):
                vq = dma_ops(next_dma) + vq; next_dma += 1
            slots = {}
            for q in range(len(vq)):
                slots.setdefault(1 + (q * 16) // len(vq), []).append(vq[q])
            vsched = sorted(slots.items())
            n = vm.need({("H", kk)})
            if n is not None: a.e(f"s_waitcnt vmcnt({n})")
            mf = 0
            for j in range(9):
                if kk + 1 < NK: rd(kk + 1, j)
                n = lg.need({(kk, j)})
                if n is not None: a.e(f"s_waitcnt lgkmcnt({n})")
                for rt in range(2):
                    c = "0" if kk == 0 else vr(acc(rt, j), 4)
                    a.e(f"v_mfma_f32_16x16x32_bf16 {vr(acc(rt,j),4)}, {vr(wF(kk&1,j),4)}, {vr(hF(kk%HD,rt),4)}, {c}")
                    mf += 1
                    while vsched and vsched[0][0] <= mf:
                        for op in vsched.pop(0)[1]: emit_op(op)
            assert not vsched
    else:
        HD = 4
        def adv(r):
            return [f"s_add_u32 s{r}, s{r}, 1", f"s_cmp_eq_u32 s{r}, 18", f"s_cselect_b32 s{r}, 0, s{r}"]
        def dma_ops(slot_sreg, slot_off, tag):
            ops = []
            for i in range(5):
                L = []
                if i == 0:
                    L += [f"s_mul_i32 s57, s60, {64*1152}", "s_add_u32 s49, s48, s57"] + adv(60)
                if i == 4: L.append("s_mov_b32 exec_hi, 0")
                L += [f"s_add_u32 m0, s{slot_sreg}, {slot_off + i*1024}", "s_nop 0",
                      f"buffer_load_dwordx4 v{vDma[i]}, s[12:15], s49 offen lds"]
                if i == 4: L.append("s_mov_b32 exec_hi, -1")
                ops.append((tag, L))
            return ops
        def hload_ops(q, tag):
            ops = []
            for rt in range(2):
                L = []
                if rt == 0 and (q & 1) == 0:
                    L += ["s_lshl_b32 s56, s61, 11", "s_add_u32 s56, s56, s41"] + adv(61)
                L += [f"s_add_u32 s50, s56, {(rt*144+(q&1))*1024}",
                      f"buffer_load_dwordx4 {vr(hF(q, rt),4)}, v{vL16}, s[8:11], s50 offen"]
                ops.append((tag, L))
            return ops
        a.e("s_mov_b32 s60, s58")
        a.e("s_mov_b32 s61, s58")
        a.e("s_mov_b32 s62, s47")
        a.e(f"s_add_u32 s63, s47, {2*K2_STAGE}")
        a.e("s_mov_b32 s64, 0")
        for rt in range(2):
            for j in range(9):
                for e in range(4): a.e(f"v_mov_b32 v{acc(rt,j)+e}, 0")
        def run(sim, it, emit):
            vmq, lgq, waits = sim
            E = (lambda x: a.e(x)) if emit else (lambda x: None)
            def eop(op):
                for x in op[1]: E(x)
                vmq.issue(op[0])
            def wait(kind, q, tags, key):
                n = q.need(tags)
                if emit:
                    m = waits.get(key)
                    if m is not None: E(f"s_waitcnt {kind}({m})")
                else:
                    if n is not None: waits[key] = n if waits.get(key) is None else min(waits[key], n)
                    else: waits.setdefault(key, None)
            def rd(q, j):
                vb = vLds[0] if q < 4 else vLds[1]
                qq = q & 3
                base = (qq >> 1) * K2_STAGE + (qq & 1) * 32 * 288 + j * 32
                w = wF(q & 1, j)
                E(f"ds_read_b64_tr_b16 {vr(w,2)}, v{vb} offset:{base}")
                E(f"ds_read_b64_tr_b16 {vr(w+2,2)}, v{vb} offset:{base+8*288}")
                lgq.issue((it * 4 + q, j)); lgq.issue((it * 4 + q, j))
            for q in range(4):
                S = 2 * it + (q >> 1); kk = 4 * it + q
                if (q & 1) == 0:
                    wait("vmcnt", vmq, {("D", S), ("D", S + 1)}, ("bar", q))
                    E("s_barrier")
                vq = []
                if (q & 1) == 0:
                    vq += dma_ops(63, K2_STAGE, ("D", S + 3)) if q == 0 else dma_ops(62, 0, ("D", S + 3))
                vq += hload_ops((q + 3) & 3, ("H", kk + 3))
                slots = {}
                for z in range(len(vq)):
                    slots.setdefault(1 + (z * 16) // len(vq), []).append(vq[z])
                vs = sorted(slots.items())
                wait("vmcnt", vmq, {("H", kk)}, ("h", q))
                mf = 0
                for j in range(9):
                    rd(q + 1, j)
                    wait("lgkmcnt", lgq, {(kk, j)}, ("l", q, j))
                    for rt in range(2):
                        E(f"v_mfma_f32_16x16x32_bf16 {vr(acc(rt,j),4)}, {vr(wF(q&1,j),4)}, {vr(hF(q,rt),4)}, {vr(acc(rt,j),4)}")
                        mf += 1
                        while vs and vs[0][0] <= mf:
                            for op in vs.pop(0)[1]: eop(op)
        def prologue(vmq, lgq, emit):
            E = (lambda x: a.e(x)) if emit else (lambda x: None)
            seq = dma_ops(62, 0, ("D", 0)) + hload_ops(0, ("H", 0)) + hload_ops(1, ("H", 1)) + dma_ops(62, K2_STAGE, ("D", 1)) + hload_ops(2, ("H", 2)) + dma_ops(63, 0, ("D", 2))
            for op in seq:
                for x in op[1]: E(x)
                vmq.issue(op[0])
            n = vmq.need({("D", 0)})
            E(f"s_waitcnt vmcnt({n})")
            E("s_barrier")
            for j in range(9):
                w = wF(0, j)
                E(f"ds_read_b64_tr_b16 {vr(w,2)}, v{vLds[0]} offset:{j*32}")
                E(f"ds_read_b64_tr_b16 {vr(w+2,2)}, v{vLds[0]} offset:{j*32+8*288}")
                lgq.issue((0, j)); lgq.issue((0, j))
        waits = {}
        vq_, lq_ = Cnt("vm", 63), Cnt("lgkm", 15)
        prologue(vq_, lq_, False)
        for it in range(4): run((vq_, lq_, waits), it, False)
        vq_, lq_ = Cnt("vm", 63), Cnt("lgkm", 15)
        prologue(vq_, lq_, True)
        a.lab("K2_LOOP")
        run((vq_, lq_, waits), 0, True)
        a.e(f"v_swap_b32 v{vLds[0]}, v{vLds[1]}")
        a.e("s_mov_b32 s59, s62")
        a.e("s_mov_b32 s62, s63")
        a.e("s_mov_b32 s63, s59")
        a.e("s_add_u32 s64, s64, 1")
        a.e("s_cmp_eq_u32 s64, 8")
        a.e("s_cselect_b32 s14, 0, s14")
        a.e("s_cmp_lt_u32 s64, 9")
        a.e("s_cbranch_scc1 K2_LOOP")
    st(lg)
    a.e("s_nop 7")
    a.e("s_nop 1")
    for rt in range(2):
        for j in range(9):
            a.e(f"s_add_u32 s50, s43, {(rt*36+j)*1024}")
            a.e(f"buffer_store_dwordx4 {vr(acc(rt,j),4)}, v{vL16}, s[16:19], s50 offen")
    st.dump()
    a.e("s_endpgm")

    a.lab("K2_SCAN")
    a.e("s_waitcnt lgkmcnt(0)")
    srd_ws(a, 8, 30, OFF_U, 2048 * 4608)
    srd_ws(a, 12, 30, OFF_HS, 2048 * 2304)
    srd(a, 16, 52, 53, 1152)
    srd(a, 20, 54, 55, 1152)
    srd(a, 24, 56, 57, 1152)
    a.e("s_lshr_b32 s33, s2, 1")
    a.e("s_and_b32 s39, s2, 1")
    if 'prio' in ABL: a.e("s_setprio 3")
    a.e("v_and_b32 v1, 63, v0")
    a.e("v_bfe_u32 v2, v1, 4, 1")
    a.e("v_and_b32 v3, 15, v1")
    a.e("v_lshrrev_b32 v19, 5, v1")
    a.e("s_lshl_b32 s34, s2, 3")
    a.e("v_lshl_add_u32 v4, v2, 2, s34")
    a.e("buffer_load_dword v5, v4, s[16:19], 0 offen")
    a.e("buffer_load_dword v6, v4, s[20:23], 0 offen")
    a.e("buffer_load_dword v7, v4, s[24:27], 0 offen")
    a.e("s_lshl_b32 s35, s39, 9")
    a.e(f"s_mov_b32 s36, {16*73728}")
    a.e("v_mul_lo_u32 v8, v19, s36")
    a.e("v_lshl_add_u32 v8, v3, 4, v8")
    a.e("v_lshl_add_u32 v8, v2, 8, v8")
    a.e("v_add_u32 v8, s35, v8")
    a.e("s_mul_i32 s34, s32, 32*72")
    a.e("s_add_u32 s34, s34, s33")
    a.e("s_lshl_b32 s34, s34, 10")
    NS = 16
    for s in range(NS):
        a.e(f"buffer_load_dwordx4 {vr(128+4*s,4)}, v8, s[8:11], s34 offen")
        a.e(f"s_add_u32 s34, s34, {72*1024}")
    a.e("s_and_b32 s35, s2, 3")
    a.e("s_lshl_b32 s35, s35, 8")
    a.e(f"s_mov_b32 s36, {16*36864}")
    a.e("v_mul_lo_u32 v9, v19, s36")
    a.e("v_lshl_add_u32 v9, v3, 4, v9")
    a.e("v_lshl_add_u32 v9, v2, 3, v9")
    a.e("v_add_u32 v9, s35, v9")
    a.e("s_mul_i32 s35, s32, 32*36")
    a.e("s_lshr_b32 s36, s33, 1")
    a.e("s_add_u32 s35, s35, s36")
    a.e("s_lshl_b32 s35, s35, 10")
    a.e("s_mov_b32 s37, 0xffff0000")
    a.e(f"s_waitcnt vmcnt({NS})")
    for c in range(2):
        b = 20 + 8 * c
        if c == 0:
            a.e("v_lshlrev_b32 v11, 16, v5"); a.e("v_lshlrev_b32 v12, 16, v6"); a.e("v_lshlrev_b32 v13, 16, v7")
        else:
            a.e("v_and_b32 v11, s37, v5"); a.e("v_and_b32 v12, s37, v6"); a.e("v_and_b32 v13, s37, v7")
        a.e(f"v_mul_f32 v13, {f32(LOG2E)}, v13")
        a.e("v_exp_f32 v13, v13")
        a.e("s_nop 0")
        a.e("v_cvt_pk_bf16_f32 v13, v13, v13")
        a.e("v_lshlrev_b32 v13, 16, v13")
        a.e("v_mul_f32 v14, v13, v11")
        a.e("v_mul_f32 v15, v13, v12")
        a.e(f"v_mul_f32 v14, {f32(LOG2E)}, v14")
        a.e("v_exp_f32 v14, v14")
        a.e("v_mul_f32 v15, 0.15915494, v15")
        a.e("v_fract_f32 v15, v15")
        a.e("v_sin_f32 v16, v15")
        a.e("v_cos_f32 v17, v15")
        a.e("s_nop 0")
        a.e(f"v_mul_f32 v{b}, v14, v17")
        a.e(f"v_mul_f32 v{b+1}, v14, v16")
        a.e(f"v_add_f32 v16, -1.0, v{b}")
        a.e("v_mul_f32 v17, v11, v11")
        a.e("v_fma_f32 v17, v12, v12, v17")
        a.e("v_rcp_f32 v18, v17")
        a.e(f"v_mul_f32 v{b+2}, v16, v11")
        a.e(f"v_fma_f32 v{b+2}, v{b+1}, v12, v{b+2}")
        a.e(f"v_mul_f32 v{b+3}, v{b+1}, v11")
        a.e(f"v_fma_f32 v{b+3}, -v16, v12, v{b+3}")
        a.e("v_add_f32 v18, v18, v18")
        a.e(f"v_mul_f32 v{b+2}, v{b+2}, v18")
        a.e(f"v_mul_f32 v{b+3}, v{b+3}, v18")
        a.e(f"v_mov_b32 v{b+4}, v{b}")
        a.e(f"v_mov_b32 v{b+5}, v{b+1}")
        for i in range(4):
            cmul(a, b+4, b+5, b+4, b+5, b+4, b+5, 16)
    for r in range(36, 40): a.e(f"v_mov_b32 v{r}, 0")
    def step(c, s, hr):
        b = 20 + 8 * c
        u = 128 + 4*s + 2*c
        t = 40 + 2 * c
        a.e(f"v_pk_fma_f32 {vr(t,2)}, {vr(b,2)}, {vr(hr,2)}, {vr(u,2)} op_sel:[0,0,0] op_sel_hi:[0,1,1]")
        a.e(f"v_pk_fma_f32 {vr(hr,2)}, {vr(b,2)}, {vr(hr,2)}, {vr(t,2)} op_sel:[1,1,0] op_sel_hi:[1,0,1] neg_lo:[1,0,0]")
    def cfma(d, m, x, y, t):
        a.e(f"v_pk_fma_f32 {vr(t,2)}, {vr(m,2)}, {vr(x,2)}, {vr(y,2)} op_sel:[0,0,0] op_sel_hi:[0,1,1]")
        a.e(f"v_pk_fma_f32 {vr(d,2)}, {vr(m,2)}, {vr(x,2)}, {vr(t,2)} op_sel:[1,1,0] op_sel_hi:[1,0,1] neg_lo:[1,0,0]")
    for s in range(NS):
        a.e(f"s_waitcnt vmcnt({NS-1-s})")
        step(0, s, 36); step(1, s, 38)
    a.e("v_xor_b32 v62, 32, v1")
    a.e("v_lshlrev_b32 v62, 2, v62")
    for r in range(4): a.e(f"ds_bpermute_b32 v{88+r}, v62, v{36+r}")
    a.e("v_cmp_ne_u32 vcc, 0, v19")
    a.e("s_waitcnt lgkmcnt(0)")
    for r in range(4):
        a.e(f"v_cndmask_b32 v{92+r}, v{36+r}, v{88+r}, vcc")
        a.e(f"v_cndmask_b32 v{96+r}, v{88+r}, v{36+r}, vcc")
    for c in range(2):
        cfma(36 + 2*c, 24 + 8*c, 92 + 2*c, 96 + 2*c, 58)
    for c in range(2):
        a.e(f"v_mov_b32 v{46+2*c}, v{24+8*c}")
        a.e(f"v_mov_b32 v{47+2*c}, v{25+8*c}")
        cmul(a, 46+2*c, 47+2*c, 46+2*c, 47+2*c, 46+2*c, 47+2*c, 60)
        a.e(f"v_mov_b32 v{50+2*c}, 1.0")
        a.e(f"v_mov_b32 v{51+2*c}, 0")
    a.e("v_mov_b32 v100, 0")
    a.e("v_mov_b32 v101, 0")
    for d in (1, 2, 4, 8):
        for r in range(4): a.e(f"v_mov_b32 v{54+r}, 0")
        a.e("s_nop 1")
        for r in range(4):
            a.e(f"v_mov_b32_dpp v{54+r}, v{36+r} row_shr:{d} row_mask:0xf bank_mask:0xf")
        a.e(f"v_and_b32 v62, {d}, v3")
        a.e("v_cmp_ne_u32 s[42:43], 0, v62")
        for c in range(2):
            cfma(36 + 2*c, 46 + 2*c, 54 + 2*c, 36 + 2*c, 58)
            cfma(60, 46 + 2*c, 50 + 2*c, 100, 58)
            a.e(f"v_cndmask_b32 v{50+2*c}, v{50+2*c}, v60, s[42:43]")
            a.e(f"v_cndmask_b32 v{51+2*c}, v{51+2*c}, v61, s[42:43]")
            cfma(46 + 2*c, 46 + 2*c, 46 + 2*c, 100, 58)
    a.e("v_cmp_eq_u32 s[40:41], 15, v3")
    a.e("s_nop 3")
    a.e("s_mov_b32 s41, 0")
    a.e("s_lshl_b32 s38, s32, 5")
    a.e("v_lshl_add_u32 v62, v2, 4, s38")
    a.e("s_and_saveexec_b64 s[44:45], s[40:41]")
    a.e("ds_write_b128 v62, v[36:39]")
    a.e("s_mov_b64 exec, s[44:45]")
    for r in range(4): a.e(f"v_mov_b32 v{54+r}, 0")
    a.e("s_nop 1")
    for r in range(4):
        a.e(f"v_mov_b32_dpp v{54+r}, v{36+r} row_shr:1 row_mask:0xf bank_mask:0xf")
    a.e("s_waitcnt lgkmcnt(0)")
    a.e("s_barrier")
    a.e("v_lshlrev_b32 v62, 4, v2")
    for q in range(3):
        a.e(f"ds_read_b128 {vr(64+4*q,4)}, v62 offset:{q*32}")
    for r in range(4): a.e(f"v_mov_b32 v{36+r}, 0")
    a.e("s_waitcnt lgkmcnt(0)")
    for q in range(3):
        a.e(f"s_cmp_le_u32 s32, {q}")
        a.e(f"s_cbranch_scc1 K2_CDONE")
        for c in range(2):
            cfma(36 + 2*c, 46 + 2*c, 36 + 2*c, 64 + 4*q + 2*c, 58)
    a.lab("K2_CDONE")
    for c in range(2):
        cfma(36 + 2*c, 50 + 2*c, 36 + 2*c, 54 + 2*c, 58)
        cfma(60, 24 + 8*c, 36 + 2*c, 92 + 2*c, 58)
        a.e(f"v_cndmask_b32 v{36+2*c}, v{36+2*c}, v60, vcc")
        a.e(f"v_cndmask_b32 v{37+2*c}, v{37+2*c}, v61, vcc")
    for s in range(NS):
        o = 76 + 2 * (s & 3)
        for c in range(2):
            hr = 36 + 2*c
            b = 20 + 8 * c
            step(c, s, hr)
            t = 84 + 2 * c
            a.e(f"v_pk_mul_f32 {vr(t,2)}, {vr(b+2,2)}, {vr(hr,2)} op_sel:[0,0] op_sel_hi:[0,1] neg_hi:[1,0]")
            a.e(f"v_pk_fma_f32 {vr(t,2)}, {vr(b+2,2)}, {vr(hr,2)}, {vr(t,2)} op_sel:[1,1,0] op_sel_hi:[1,0,1] neg_lo:[1,0,0] neg_hi:[1,0,0]")
            a.e(f"v_cvt_pk_bf16_f32 v{o+c}, v{t}, v{t+1}")
        a.e(f"buffer_store_dwordx2 {vr(o,2)}, v9, s[12:15], s35 offen")
        a.e(f"s_add_u32 s35, s35, {36*1024}")
    a.lab("K2_END")
    a.e("s_endpgm")

def gen_k3(a):
    kernel_head(a, "k3_kernel")
    st = Stamper(a, 'stamp3', first=80)
    a.e("s_cmp_ge_u32 s2, 256")
    a.e("s_cbranch_scc1 K3_END2")
    st()
    a.e("s_load_dwordx2 s[4:5], s[0:1], 0")
    a.e("s_load_dwordx2 s[6:7], s[0:1], 64")
    a.e("s_load_dwordx2 s[28:29], s[0:1], 104")
    a.e("s_load_dwordx2 s[30:31], s[0:1], 120")
    acc = lambda rt, j: 184 + (rt * 9 + j) * 4
    D = 3
    cF = lambda slot, j: 40 + (slot * 11 + j) * 4
    hF = lambda slot, rt: 40 + (slot * 11 + 9 + rt) * 4
    a.e("v_lshrrev_b32 v12, 6, v0")
    a.e("s_nop 0")
    a.e("v_readfirstlane_b32 s32, v12")
    a.e("s_and_b32 s37, s2, 3")
    a.e("s_lshr_b32 s36, s2, 2")
    a.e("s_waitcnt lgkmcnt(0)")
    srd_ws(a, 8, 30, OFF_HS, 2048 * 2304)
    srd_ws(a, 12, 30, OFF_CI, 576 * 2304)
    srd_ws(a, 16, 30, OFF_PART, 4 * 2048 * 2304)
    srd(a, 20, 4, 5, 2048 * 1152)
    srd_ws(a, 24, 30, OFF_XN, 2048 * 1152)
    srd(a, 44, 6, 7, 1152)
    srd(a, 48, 28, 29, 2048 * 2304)
    a.e("v_and_b32 v12, 63, v0")
    a.e("v_lshrrev_b32 v13, 4, v12")
    a.e("v_and_b32 v14, 15, v12")
    a.e("v_lshlrev_b32 v4, 4, v12")
    a.e("s_lshl_b32 s39, s36, 1")
    a.e("s_mul_i32 s40, s39, 36")
    a.e("s_mul_i32 s41, s32, 9")
    a.e("s_add_u32 s40, s40, s41")
    a.e("s_lshl_b32 s40, s40, 10")
    a.e("s_mul_i32 s42, s37, 9*36")
    a.e("s_add_u32 s42, s42, s41")
    a.e("s_lshl_b32 s42, s42, 10")
    a.e("s_lshr_b32 s52, s2, 3")
    a.e("s_mul_i32 s53, s52, 57")
    a.e("s_lshr_b32 s53, s53, 9")
    a.e("s_mul_i32 s53, s53, 9")
    a.e("s_sub_u32 s52, s52, s53")
    for ks in range(9):
        a.e(f"s_add_u32 s53, s52, {ks}")
        a.e("s_cmp_ge_u32 s53, 9")
        a.e("s_cselect_b32 s54, 9, 0")
        a.e("s_sub_u32 s53, s53, s54")
        a.e(f"s_lshl_b32 s{60+ks}, s53, 10")
    vm = Cnt("vm", 63)
    def ld(ks):
        a.e(f"s_add_u32 s55, s42, s{60+ks}")
        a.e(f"s_add_u32 s56, s40, s{60+ks}")
        for j in range(9):
            a.e(f"s_add_u32 s43, s55, {(j*36)*1024}")
            a.e(f"buffer_load_dwordx4 {vr(cF(ks%D,j),4)}, v4, s[12:15], s43 offen")
            vm.issue(("C", ks, j))
            if j == 0:
                for rt in range(2):
                    a.e(f"s_add_u32 s43, s56, {(rt*36)*1024}")
                    a.e(f"buffer_load_dwordx4 {vr(hF(ks%D,rt),4)}, v4, s[8:11], s43 offen")
                    vm.issue(("H", ks))
    for ks in range(D): ld(ks)
    a.e("s_mov_b32 s53, 0xffff0000")
    a.e("s_lshr_b32 s54, s39, 5")
    a.e("s_lshl_b32 s54, s54, 9")
    a.e("s_and_b32 s55, s39, 31")
    a.e("s_add_u32 s54, s54, s55")
    a.e("v_lshl_add_u32 v15, v14, 5, s54")
    a.e("v_mul_u32_u24 v6, 0x900, v15")
    a.e("v_lshl_add_u32 v6, v13, 4, v6")
    a.e("s_mul_i32 s54, s37, 576")
    a.e("v_add_u32 v6, s54, v6")
    a.e("v_lshrrev_b32 v7, 1, v6")
    a.e("s_mul_i32 s55, s37, 288")
    a.e("v_lshlrev_b32 v8, 3, v13")
    a.e("v_add_u32 v8, s55, v8")
    XNOFF(a)
    a.e("s_mul_i32 s55, s39, 36")
    a.e("s_mul_i32 s56, s37, 9")
    a.e("s_add_u32 s55, s55, s56")
    a.e("s_lshl_b32 s70, s55, 10")
    for i in range(5):
        b = 72 + 4 * i if i < 5 else None
    def tile_scalars(i):
        a.e(f"s_add_u32 s57, s32, {4*i}")
        a.e("s_min_u32 s57, s57, 17")
        a.e("s_cmp_ge_u32 s57, 9")
        a.e("s_cselect_b32 s58, 9, 0")
        a.e("s_cselect_b32 s59, 1, 0")
        a.e("s_sub_u32 s58, s57, s58")
        a.e(f"s_mul_i32 s{72+i}, s59, 2304")
        a.e("s_lshl_b32 s34, s58, 6")
        a.e(f"s_add_u32 s{72+i}, s{72+i}, s34")
        a.e(f"s_lshr_b32 s34, s{72+i}, 1")
        a.e("s_lshl_b32 s35, s58, 5")
        XNSOFF(a)
        a.e("s_mul_i32 s41, s59, 36")
        a.e("s_add_u32 s41, s41, s58")
        a.e("s_lshl_b32 s41, s41, 10")
        a.e("s_add_u32 s41, s41, s70")
    eR = lambda i: 40 + 22 * i
    eR = lambda i: 40 + 24 * i
    def eload(i):
        tile_scalars(i)
        b = eR(i)
        for k in range(4):
            a.e(f"s_add_u32 s43, s41, {k*2048*2304}")
            a.e(f"buffer_load_dwordx4 {vr(b+4*k,4)}, v4, s[16:19], s43 offen"); vm.issue(("E", i))
        a.e(f"buffer_load_dwordx2 {vr(b+16,2)}, v7, s[20:23], s34 offen"); vm.issue(("E", i))
        a.e(f"buffer_load_dwordx2 {vr(b+18,2)}, v11, s[24:27], s38 offen"); vm.issue(("E", i))
        a.e(f"buffer_load_dwordx2 {vr(b+20,2)}, v8, s[44:47], s35 offen"); vm.issue(("E", i))
    for ks in range(9):
        for j in range(9):
            n = vm.need({("C", ks, j), ("H", ks)})
            if n is not None: a.e(f"s_waitcnt vmcnt({n})")
            for rt in range(2):
                c = "0" if ks == 0 else vr(acc(rt, j), 4)
                a.e(f"v_mfma_f32_16x16x32_bf16 {vr(acc(rt,j),4)}, {vr(cF(ks%D,j),4)}, {vr(hF(ks%D,rt),4)}, {c}")
        if ks + D < 9: ld(ks + D)
        if ks == 6: eload(0)
        if ks == 7: eload(1); eload(2)
        if ks == 8: eload(3); eload(4)
    st()
    a.e("s_nop 7")
    a.e("s_nop 1")
    a.e("s_mul_i32 s52, s32, 18432")
    a.e("v_add_u32 v5, s52, v4")
    for t in range(18):
        rt, j = divmod(t, 9)
        a.e(f"ds_write_b128 v5, {vr(acc(rt,j),4)} offset:{t*1024}")
    a.e("s_lshl_b32 s56, s32, 10")
    a.e("v_add_u32 v9, s56, v4")
    a.e("v_add_u32 v10, 36864, v9")
    a.e("s_waitcnt lgkmcnt(0)")
    a.e("s_barrier")
    for i in range(5):
        if i == 4:
            a.e("s_cmp_ge_u32 s32, 2")
            a.e(f"s_cbranch_scc1 K3_END")
        b = eR(i); L = 184 + 16 * (i & 3)
        for w in range(4):
            a.e(f"ds_read_b128 {vr(L+4*w,4)}, v{9+(w>>1)} offset:{(w&1)*18432 + i*4096}")
        n = vm.need({("E", i)})
        if n is not None: a.e(f"s_waitcnt vmcnt({n})")
        for e in range(4):
            a.e(f"v_add_f32 v{b+e}, v{b+e}, v{b+4+e}")
            a.e(f"v_add_f32 v{b+8+e}, v{b+8+e}, v{b+12+e}")
            a.e(f"v_add_f32 v{b+e}, v{b+e}, v{b+8+e}")
        a.e(f"v_cvt_pk_bf16_f32 v{b+4}, v{b}, v{b+1}")
        a.e(f"v_cvt_pk_bf16_f32 v{b+5}, v{b+2}, v{b+3}")
        for h in range(2):
            a.e(f"v_lshlrev_b32 v{b+2*h}, 16, v{b+4+h}")
            a.e(f"v_and_b32 v{b+1+2*h}, s53, v{b+4+h}")
            a.e(f"v_lshlrev_b32 v{20+2*h}, 16, v{b+16+h}")
            a.e(f"v_and_b32 v{21+2*h}, s53, v{b+16+h}")
            a.e(f"v_lshlrev_b32 v{24+2*h}, 16, v{b+18+h}")
            a.e(f"v_and_b32 v{25+2*h}, s53, v{b+18+h}")
            a.e(f"v_lshlrev_b32 v{28+2*h}, 16, v{b+20+h}")
            a.e(f"v_and_b32 v{29+2*h}, s53, v{b+20+h}")
        for e in range(4):
            a.e(f"v_mul_f32 v{24+e}, v{24+e}, v{28+e}")
        a.e("v_cvt_pk_bf16_f32 v32, v24, v25")
        a.e("v_cvt_pk_bf16_f32 v33, v26, v27")
        for h in range(2):
            a.e(f"v_lshlrev_b32 v{24+2*h}, 16, v{32+h}")
            a.e(f"v_and_b32 v{25+2*h}, s53, v{32+h}")
        a.e("s_waitcnt lgkmcnt(0)")
        for e in range(4):
            a.e(f"v_add_f32 v{L+e}, v{L+e}, v{L+4+e}")
            a.e(f"v_add_f32 v{L+8+e}, v{L+8+e}, v{L+12+e}")
            a.e(f"v_add_f32 v{L+e}, v{L+e}, v{L+8+e}")
            a.e(f"v_add_f32 v{L+e}, v{L+e}, v{24+e}")
            a.e(f"v_add_f32 v{L+e}, v{20+e}, v{L+e}")
            a.e(f"v_add_f32 v{b+8+e}, v{L+e}, v{b+e}")
        a.e(f"buffer_store_dwordx4 {vr(b+8,4)}, v6, s[48:51], s{72+i} offen")
    a.lab("K3_END")
    st.dump()
    a.lab("K3_END2")
    a.e("s_endpgm")

def XNOFF(a):
    if not M32:
        a.e("s_mul_i32 s55, s39, 18432")
        a.e("s_mul_i32 s56, s37, 4608")
        a.e("s_add_u32 s55, s55, s56")
        a.e("v_lshrrev_b32 v16, 1, v13")
        a.e("v_lshlrev_b32 v16, 8, v16")
        a.e("v_lshl_add_u32 v16, v14, 4, v16")
        a.e("v_and_b32 v17, 1, v13")
        a.e("v_lshl_add_u32 v16, v17, 3, v16")
        a.e("v_add_u32 v11, s55, v16")
        return
    a.e("s_mul_i32 s55, s36, 36864")
    a.e("s_mul_i32 s56, s37, 9216")
    a.e("s_add_u32 s55, s55, s56")
    a.e("v_lshrrev_b32 v16, 1, v13")
    a.e("v_lshlrev_b32 v16, 9, v16")
    a.e("v_lshl_add_u32 v16, v14, 4, v16")
    a.e("v_and_b32 v17, 1, v13")
    a.e("v_lshl_add_u32 v16, v17, 3, v16")
    a.e("v_add_u32 v11, s55, v16")
def XNSOFF(a):
    if not M32:
        a.e("s_mul_i32 s38, s59, 18432")
        a.e("s_lshl_b32 s41, s58, 9")
        a.e("s_add_u32 s38, s38, s41")
        return
    a.e("s_lshl_b32 s38, s59, 8")
    a.e("s_lshl_b32 s41, s58, 10")
    a.e("s_add_u32 s38, s38, s41")

def gen(a):
    gen_k2(a)
    gen_k3(a)
    return [kd("k2_kernel", 256, 102), kd("k3_kernel", 256, 102)]
```

```python
import sys
sys.path.insert(0, "dev")
from common import *

def gen_k0(a):
    kernel_head(a, "k0_kernel")
    if 'nopf0' in ABL:
        a.e("s_cmp_ge_u32 s2, 580")
        a.e("s_cbranch_scc1 K0_END")
    else:
        a.e("s_cmp_ge_u32 s2, 836")
        a.e("s_cbranch_scc1 K0_END")
        a.e("s_cmp_lt_u32 s2, 256")
        a.e("s_cbranch_scc1 K0_PF")
        a.e("s_sub_u32 s2, s2, 256")
    a.e("s_load_dwordx2 s[4:5], s[0:1], 0")
    a.e("s_load_dwordx4 s[8:11], s[0:1], 24")
    a.e("s_load_dwordx4 s[12:15], s[0:1], 40")
    a.e("s_load_dwordx2 s[6:7], s[0:1], 120")
    a.e("s_waitcnt lgkmcnt(0)")
    a.e("s_cmp_ge_u32 s2, 256")
    a.e("s_cbranch_scc1 K0_B")
    srd(a, 16, 4, 5, 2048 * 1152)
    srd_ws(a, 20, 6, OFF_XN, 2048 * 1152)
    a.e("v_lshrrev_b32 v1, 5, v0")
    a.e("v_and_b32 v2, 31, v0")
    a.e("s_lshl_b32 s24, s2, 3")
    a.e("v_add_u32 v1, s24, v1")
    a.e("v_mul_u32_u24 v3, 0x480, v1")
    a.e("v_lshl_add_u32 v3, v2, 2, v3")
    for i in range(9):
        a.e(f"buffer_load_dword v{10+i}, v3, s[16:19], 0 offen offset:{128*i}")
    if M32:
        a.e("v_lshrrev_b32 v44, 9, v1")
        a.e("v_and_b32 v45, 31, v1")
        a.e("v_lshl_add_u32 v44, v44, 5, v45")
        a.e("v_bfe_u32 v45, v1, 5, 4")
        a.e("v_and_b32 v46, 1, v44")
        a.e("v_lshl_add_u32 v45, v46, 4, v45")
        a.e("v_lshrrev_b32 v44, 1, v44")
        a.e("v_mul_u32_u24 v44, 0x9000, v44")
        a.e("v_lshl_add_u32 v44, v45, 4, v44")
        a.e("v_lshrrev_b32 v45, 2, v2")
        a.e("v_lshl_add_u32 v44, v45, 9, v44")
        a.e("v_and_b32 v45, 3, v2")
        a.e("v_lshl_add_u32 v44, v45, 2, v44")
    else:
        a.e("v_lshrrev_b32 v44, 9, v1")
        a.e("v_and_b32 v45, 31, v1")
        a.e("v_lshl_add_u32 v44, v44, 5, v45")
        a.e("v_bfe_u32 v45, v1, 5, 4")
        a.e("v_mul_u32_u24 v44, 0x4800, v44")
        a.e("v_lshl_add_u32 v44, v45, 4, v44")
        a.e("v_lshrrev_b32 v45, 2, v2")
        a.e("v_lshl_add_u32 v44, v45, 8, v44")
        a.e("v_and_b32 v45, 3, v2")
        a.e("v_lshl_add_u32 v44, v45, 2, v44")
    a.e("s_mov_b32 s25, 0xffff0000")
    a.e("s_waitcnt vmcnt(0)")
    for i in range(9):
        a.e(f"v_lshlrev_b32 v{20+2*i}, 16, v{10+i}")
        a.e(f"v_and_b32 v{21+2*i}, s25, v{10+i}")
    a.e("v_add_f32 v4, v20, v21")
    a.e("v_add_f32 v5, v22, v23")
    for i in range(2, 9):
        a.e(f"v_add_f32 v{4+(i&1)}, v{4+(i&1)}, v{20+2*i}")
        a.e(f"v_add_f32 v{4+(i&1)}, v{4+(i&1)}, v{21+2*i}")
    a.e("v_add_f32 v4, v4, v5")
    def reduce32(r):
        for off in (0x041F, 0x081F, 0x101F, 0x201F, 0x401F):
            a.e(f"ds_swizzle_b32 v9, v{r} offset:{off}")
            a.e("s_waitcnt lgkmcnt(0)")
            a.e(f"v_add_f32 v{r}, v{r}, v9")
    reduce32(4)
    a.e(f"v_mul_f32 v5, {f32(1.0/576)}, v4")
    a.e("v_mov_b32 v6, 0")
    a.e("v_mov_b32 v7, 0")
    for i in range(18):
        a.e(f"v_sub_f32 v8, v{20+i}, v5")
        a.e(f"v_fma_f32 v{6+(i&1)}, v8, v8, v{6+(i&1)}")
    a.e("v_add_f32 v6, v6, v7")
    reduce32(6)
    a.e(f"v_mul_f32 v6, {f32(1.0/576)}, v6")
    a.e("v_cvt_pk_bf16_f32 v7, v5, v6")
    a.e("v_lshlrev_b32 v5, 16, v7")
    a.e("v_and_b32 v6, s25, v7")
    a.e(f"v_add_f32 v6, {f32(1e-5)}, v6")
    a.e("v_cvt_pk_bf16_f32 v7, v6, v6")
    a.e("v_lshlrev_b32 v6, 16, v7")
    a.e("v_sqrt_f32 v6, v6")
    a.e("s_nop 0")
    a.e("v_cvt_pk_bf16_f32 v7, v6, v6")
    a.e("v_lshlrev_b32 v6, 16, v7")
    a.e("v_rcp_f32 v8, v6")
    a.e("s_nop 0")
    for i in range(9):
        x0, x1 = 20 + 2*i, 21 + 2*i
        a.e(f"v_sub_f32 v{x0}, v{x0}, v5")
        a.e(f"v_sub_f32 v{x1}, v{x1}, v5")
        a.e(f"v_cvt_pk_bf16_f32 v7, v{x0}, v{x1}")
        a.e(f"v_lshlrev_b32 v{x0}, 16, v7")
        a.e(f"v_and_b32 v{x1}, s25, v7")
        a.e(f"v_mul_f32 v40, v{x0}, v8")
        a.e(f"v_mul_f32 v41, v{x1}, v8")
        a.e(f"v_fma_f32 v42, -v40, v6, v{x0}")
        a.e(f"v_fma_f32 v43, -v41, v6, v{x1}")
        a.e(f"v_fma_f32 v40, v42, v8, v40")
        a.e(f"v_fma_f32 v41, v43, v8, v41")
        a.e(f"v_cvt_pk_bf16_f32 v{10+i}, v40, v41")
        a.e(f"s_mov_b32 s26, {i*(4096 if M32 else 2048)}")
        a.e(f"buffer_store_dword v{10+i}, v44, s[20:23], s26 offen")
    a.e("s_endpgm")
    a.lab("K0_B")
    a.e("s_cmp_ge_u32 s2, 418")
    a.e("s_cbranch_scc1 K0_C")
    srd(a, 16, 8, 9, 576 * 1152)
    srd(a, 20, 10, 11, 576 * 1152)
    srd_ws(a, 24, 6, OFF_WB, 576 * 9216)
    a.e("s_sub_u32 s28, s2, 256")
    a.e("s_mul_i32 s29, s28, 57")
    a.e("s_lshr_b32 s29, s29, 9")
    a.e("s_mul_i32 s30, s29, 9")
    a.e("s_sub_u32 s30, s28, s30")
    a.e("v_lshrrev_b32 v1, 6, v0")
    a.e("v_and_b32 v2, 63, v0")
    a.e("s_lshl_b32 s29, s29, 2")
    a.e("v_add_u32 v1, s29, v1")
    a.e("s_lshl_b32 s30, s30, 6")
    a.e("v_add_u32 v2, s30, v2")
    a.e("v_mul_u32_u24 v3, 0x480, v2")
    a.e("v_lshl_add_u32 v3, v1, 4, v3")
    a.e("buffer_load_dwordx4 v[8:11], v3, s[16:19], 0 offen")
    a.e("buffer_load_dwordx4 v[12:15], v3, s[20:23], 0 offen")
    a.e("v_mul_u32_u24 v4, 0x12000, v1")
    a.e("v_lshl_add_u32 v4, v2, 2, v4")
    a.e("s_mov_b32 s31, 0x05040100")
    a.e("s_mov_b32 s32, 0x07060302")
    a.e("s_mov_b32 s33, 9216")
    a.e("s_waitcnt vmcnt(0)")
    for i in range(4):
        a.e(f"v_perm_b32 v{16+2*i}, v{12+i}, v{8+i}, s31")
        a.e(f"v_perm_b32 v{17+2*i}, v{12+i}, v{8+i}, s32")
    for i in range(8):
        a.e(f"buffer_store_dword v{16+i}, v4, s[24:27], 0 offen")
        if i < 7: a.e("v_add_u32 v4, s33, v4")
    a.e("s_endpgm")
    a.lab("K0_C")
    srd(a, 16, 12, 13, 576 * 1152)
    srd(a, 20, 14, 15, 576 * 1152)
    srd_ws(a, 24, 6, OFF_CI, 576 * 2304)
    a.e("v_lshrrev_b32 v1, 6, v0")
    a.e("s_nop 0")
    a.e("v_readfirstlane_b32 s29, v1")
    a.e("s_sub_u32 s28, s2, 418")
    a.e("s_lshl_b32 s28, s28, 2")
    a.e("s_add_u32 s28, s28, s29")
    a.e("s_mul_i32 s29, s28, 3641")
    a.e("s_lshr_b32 s29, s29, 16")
    a.e("s_mul_i32 s30, s29, 18")
    a.e("s_sub_u32 s30, s28, s30")
    a.e("v_and_b32 v1, 15, v0")
    a.e("v_bfe_u32 v2, v0, 4, 2")
    a.e("s_lshl_b32 s31, s30, 2")
    a.e("v_add_u32 v2, s31, v2")
    a.e("s_lshl_b32 s31, s29, 4")
    a.e("v_add_u32 v3, s31, v1")
    a.e("v_mul_u32_u24 v3, 0x480, v3")
    a.e("v_lshl_add_u32 v3, v2, 4, v3")
    a.e("buffer_load_dwordx4 v[8:11], v3, s[16:19], 0 offen")
    a.e("buffer_load_dwordx4 v[12:15], v3, s[20:23], 0 offen")
    a.e("s_mul_i32 s31, s29, 36864")
    a.e("v_lshlrev_b32 v4, 9, v2")
    a.e("v_lshl_add_u32 v4, v1, 4, v4")
    a.e("v_add_u32 v4, s31, v4")
    a.e("s_mov_b32 s31, 0x05040100")
    a.e("s_mov_b32 s32, 0x07060302")
    a.e("s_waitcnt vmcnt(0)")
    for i in range(4):
        a.e(f"v_perm_b32 v{16+2*i}, v{12+i}, v{8+i}, s31")
        a.e(f"v_perm_b32 v{17+2*i}, v{12+i}, v{8+i}, s32")
    a.e("buffer_store_dwordx4 v[16:19], v4, s[24:27], 0 offen")
    a.e("buffer_store_dwordx4 v[20:23], v4, s[24:27], 0 offen offset:256")
    a.lab("K0_END")
    a.e("s_endpgm")
    if 'nopf0' in ABL: return
    a.lab("K0_PF")
    a.e("s_load_dwordx4 s[4:7], s[0:1], 80")
    a.e("s_and_b32 s20, s2, 7")
    a.e("s_lshr_b32 s21, s2, 3")
    a.e("s_mul_i32 s20, s20, 1152")
    a.e(f"s_mul_i32 s21, s21, {18*9216}")
    a.e("s_add_u32 s20, s20, s21")
    a.e("s_movk_i32 s22, 2731")
    a.e("s_waitcnt lgkmcnt(0)")
    srd(a, 8, 4, 5, 576 * 9216)
    srd(a, 12, 6, 7, 576 * 9216)
    if 'nopf0' in ABL: a.e("s_endpgm")
    for i in range(2):
        a.e(f"v_add_u32 v1, {256*i}, v0")
        a.e("v_mul_lo_u32 v2, v1, s22")
        a.e("v_lshrrev_b32 v2, 16, v2")
        a.e("v_mul_u32_u24 v3, 24, v2")
        a.e("v_sub_u32 v3, v1, v3")
        a.e("v_mul_u32_u24 v4, 43, v3")
        a.e("v_lshrrev_b32 v4, 8, v4")
        a.e("v_mul_u32_u24 v5, 6, v4")
        a.e("v_sub_u32 v5, v3, v5")
        a.e("v_min_u32 v2, 17, v2")
        a.e("v_mul_u32_u24 v2, 0x2400, v2")
        a.e("v_mul_u32_u24 v4, 288, v4")
        a.e("v_lshl_add_u32 v2, v5, 4, v2")
        a.e("v_add_u32 v2, v2, v4")
        a.e(f"buffer_load_dwordx4 {vr(8+8*i,4)}, v2, s[8:11], s20 offen")
        a.e(f"buffer_load_dwordx4 {vr(12+8*i,4)}, v2, s[12:15], s20 offen")
    a.e("s_waitcnt vmcnt(0)")
    a.e("s_endpgm")

K1_R = 8
K1_STAGE = 12544
K1_UOFF = 6272
def gen_k1(a):
    R = K1_R
    kernel_head(a, "k1_kernel")
    vA = lambda k16: 112 + k16 * 4
    acc = lambda j: 64 + j * 16
    wF = lambda par, j: 40 + (par * 3 + j) * 4
    vLds = [1, 2]; vDma = [3, 4]; vH = 5; vU = 0
    PK = 6
    TMP = 30
    vPF = 31
    st = Stamper(a, 'stamp1', first=80)
    a.e("s_cmp_ge_u32 s2, 256")
    a.e("s_cbranch_scc1 K1_END")
    st()
    a.e("s_load_dwordx4 s[4:7], s[0:1], 80")
    a.e("s_load_dwordx2 s[30:31], s[0:1], 120")
    a.e("s_load_dwordx2 s[28:29], s[0:1], 96")
    a.e("v_lshrrev_b32 v10, 6, v0")
    a.e("s_nop 0")
    a.e("v_readfirstlane_b32 s32, v10")
    a.e("s_and_b32 s33, s2, 7")
    a.e("s_lshr_b32 s34, s2, 3")
    a.e("s_and_b32 s35, s34, 3")
    a.e("s_lshl_b32 s36, s33, 2")
    a.e("s_add_u32 s36, s36, s35")
    a.e("s_lshr_b32 s37, s34, 2")
    a.e("s_lshl_b32 s38, s33, 1")
    a.e("s_add_u32 s38, s38, s35")
    a.e("s_add_u32 s39, s33, 16")
    a.e("s_cmp_lt_u32 s35, 2")
    a.e("s_cselect_b32 s38, s38, s39")
    a.e("s_cselect_b32 s27, 1, 0")
    a.e("s_cmp_eq_u32 s35, 2")
    a.e("s_cselect_b32 s39, 1, 0")
    a.e("s_cmp_lt_u32 s33, 2")
    a.e("s_cselect_b32 s39, s39, 0")
    a.e("s_or_b32 s27, s27, s39")
    a.e("s_min_u32 s38, s38, 17")
    a.e("s_waitcnt lgkmcnt(0)")
    srd_ws(a, 8, 30, OFF_XN, 2048 * 1152)
    srd_ws(a, 16, 30, OFF_H, 2048 * 9216)
    srd_ws(a, 20, 30, OFF_U, 2048 * 4608)
    a.e(f"s_add_u32 s24, s30, {OFF_WB}")
    a.e("s_addc_u32 s25, s31, 0")
    a.e("s_cmp_lg_u32 s27, 0")
    a.e(f"s_cselect_b32 s22, {2048*4608}, 0")
    a.e(f"s_cselect_b32 s26, {576*9216}, 0")
    a.e("s_cmp_lt_u32 s32, 4")
    a.e("s_cselect_b32 s12, s4, s6")
    a.e("s_cselect_b32 s13, s5, s7")
    a.e(f"s_mov_b32 s14, {576*9216}")
    a.e("s_mov_b32 s15, 0x00020000")
    a.e("s_cselect_b32 s44, 0, 64")
    a.e("v_and_b32 v10, 63, v0")
    a.e("v_lshrrev_b32 v11, 4, v10")
    a.e("v_and_b32 v12, 15, v10")
    a.e("s_lshl_b32 s39, s37, 3")
    a.e("s_add_u32 s39, s39, s32")
    a.e("v_lshlrev_b32 v14, 4, v10")
    a.e("s_mul_i32 s40, s39, 36864")
    a.e("s_mul_i32 s41, s36, 288")
    a.e("s_lshl_b32 s45, s38, 7")
    a.e("s_add_u32 s44, s44, s45")
    a.e("v_lshrrev_b32 v16, 1, v11")
    a.e("v_lshlrev_b32 v16, 3, v16")
    a.e("v_bfe_u32 v17, v10, 2, 2")
    a.e("v_add_u32 v16, v16, v17")
    a.e("v_mul_u32_u24 v16, 96, v16")
    a.e("v_and_b32 v17, 3, v10")
    a.e("v_lshl_add_u32 v16, v17, 3, v16")
    a.e("v_and_b32 v17, 1, v11")
    a.e(f"v_mul_u32_u24 v17, {K1_UOFF}, v17")
    a.e(f"v_add_u32 v{vLds[0]}, v16, v17")
    a.e(f"v_add_u32 v{vLds[1]}, {4*K1_STAGE}, v{vLds[0]}")
    a.e("s_and_b32 s45, s32, 3")
    a.e("s_mul_i32 s46, s45, 96")
    for i in range(2):
        a.e(f"v_add_u32 v16, s46, v10")
        if i: a.e(f"v_add_u32 v16, {64*i}, v16")
        a.e("v_mul_u32_u24 v17, 171, v16")
        a.e("v_lshrrev_b32 v17, 10, v17")
        a.e("v_mul_u32_u24 v18, 6, v17")
        a.e("v_sub_u32 v18, v16, v18")
        a.e("v_and_b32 v17, 63, v17")
        a.e("v_mul_u32_u24 v19, 0x2400, v17")
        a.e(f"v_lshl_add_u32 v{vDma[i]}, v18, 4, v19")
    a.e("s_lshr_b32 s47, s32, 2")
    a.e(f"s_mul_i32 s47, s47, {K1_UOFF}")
    a.e("s_mul_i32 s48, s45, 1536")
    a.e("s_add_u32 s47, s47, s48")
    a.e("s_mul_i32 s42, s39, 294912")
    a.e("s_mul_i32 s43, s36, 4608")
    a.e("s_add_u32 s42, s42, s43")
    a.e("v_and_b32 v17, 1, v11")
    a.e("s_mov_b32 s43, 147456")
    a.e("v_mul_lo_u32 v16, v17, s43")
    a.e("v_lshl_add_u32 v16, v12, 4, v16")
    a.e("v_lshrrev_b32 v18, 5, v10")
    a.e("v_lshl_add_u32 v16, v18, 3, v16")
    a.e(f"v_add_u32 v{vH}, s42, v16")
    a.e("s_mul_i32 s42, s39, 144")
    a.e("s_lshl_b32 s43, s38, 2")
    a.e("s_add_u32 s42, s42, s43")
    a.e("s_lshl_b32 s42, s42, 10")
    a.e("v_mul_u32_u24 v16, 0x12000, v17")
    a.e("v_lshl_add_u32 v16, v12, 4, v16")
    a.e("v_lshl_add_u32 v16, v18, 8, v16")
    a.e(f"v_add_u32 v{vU}, s42, v16")
    a.e("s_mov_b32 s50, 0xffff0000")
    srd(a, 4, 28, 29, 4608 * 1152)
    a.e("s_lshr_b32 s27, s33, 1")
    a.e(f"s_mul_i32 s27, s27, {1152*1152}")
    a.e("s_mul_i32 s56, s34, 41472")
    a.e("s_add_u32 s27, s27, s56")
    a.e("s_mul_i32 s56, s32, 5184")
    a.e("s_add_u32 s27, s27, s56")
    a.e("s_lshl_b32 s57, s32, 10")
    a.e("v_lshlrev_b32 v31, 4, v10")

    vm = Cnt("vm", 63); lg = Cnt("lgkm", 15)
    NST = 36
    a.e("s_lshl_b32 s53, s35, 1")
    a.e("s_add_u32 s53, s53, s37")
    a.e("s_cmp_ge_u32 s53, 9")
    a.e("s_cselect_b32 s54, 9, 0")
    a.e("s_sub_u32 s53, s53, s54")
    if 'norot' in ABL: a.e("s_mov_b32 s53, 0")
    for S in range(9):
        a.e(f"s_add_u32 s54, s53, {S}")
        a.e("s_cmp_ge_u32 s54, 9")
        a.e("s_cselect_b32 s55, 9, 0")
        a.e("s_sub_u32 s54, s54, s55")
        a.e(f"s_mul_i32 s{60+S}, s54, {64*9216}")
        a.e(f"s_lshl_b32 s{70+S}, s54, 12")
        a.e(f"s_add_u32 s{70+S}, s{70+S}, s40")
    def dma_ops(S):
        ops = []
        for i in range(2):
            L = []
            if S == 27 and i == 0:
                L += ["s_mov_b32 s12, s24", "s_mov_b32 s13, s25", "s_mov_b32 s14, s26"]
            if S < 27:
                p, stg = divmod(S, 9)
                L.append(f"s_add_u32 s49, s41, s{60+stg}")
                if p: L.append(f"s_add_u32 s49, s49, {p*96}")
            else:
                L.append(f"s_add_u32 s49, s44, s{60+S-27}")
            if i == 1: L.append("s_mov_b32 exec_hi, 0")
            L.append(f"s_add_u32 m0, s47, {(S % R)*K1_STAGE + i*1024}")
            L.append("s_nop 0")
            L.append(f"buffer_load_dwordx4 v{vDma[i]}, s[12:15], s49 offen lds")
            if i == 1: L.append("s_mov_b32 exec_hi, -1")
            ops.append((("D", S), L))
        return ops
    def aload_ops(S):
        ops = []
        for q in range(4):
            ops.append((("A", S * 4 + q), [f"buffer_load_dwordx4 {vr(vA(S*4+q),4)}, v14, s[8:11], s{70+S} offen offset:{q*1024}"]))
        return ops
    def emit_op(op):
        tag, L = op
        for x in L: a.e(x)
        vm.issue(tag)
    for S in range(2):
        for op in dma_ops(S) + aload_ops(S): emit_op(op)
    next_dma = 2

    def rd(gk, j):
        S, q = divmod(gk, 4)
        base = (S % R) * K1_STAGE + q * 16 * 96 + j * 32
        vb = vLds[0]
        if (S % R) >= 4:
            base -= 4 * K1_STAGE; vb = vLds[1]
        w = wF(gk & 1, j)
        a.e(f"ds_read_b64_tr_b16 {vr(w,2)}, v{vb} offset:{base}")
        a.e(f"ds_read_b64_tr_b16 {vr(w+2,2)}, v{vb} offset:{base+384}")
        lg.issue((gk, j)); lg.issue((gk, j))

    def epi_stream(p):
        out = []
        t = TMP
        for j in range(3):
            for ap in range(2):
                pg = PK + j * 8 + ap * 2; pu = PK + j * 8 + 4 + ap * 2
                for h in range(2):
                    out += [
                        f"v_lshlrev_b32 v{t+2}, 16, v{pg+h}",
                        f"v_and_b32 v{t+3}, s50, v{pg+h}",
                        f"v_mul_f32 v{t+4}, {f32(-LOG2E)}, v{t+2}",
                        f"v_mul_f32 v{t+5}, {f32(-LOG2E)}, v{t+3}",
                        f"v_exp_f32 v{t+4}, v{t+4}",
                        f"v_exp_f32 v{t+5}, v{t+5}",
                        f"v_lshlrev_b32 v{t+6}, 16, v{pu+h}",
                        f"v_add_f32 v{t+4}, 1.0, v{t+4}",
                        f"v_add_f32 v{t+5}, 1.0, v{t+5}",
                        f"v_rcp_f32 v{t+4}, v{t+4}",
                        f"v_rcp_f32 v{t+5}, v{t+5}",
                        f"v_and_b32 v{t+7}, s50, v{pu+h}",
                        f"v_mul_f32 v{t+4}, v{t+2}, v{t+4}",
                        f"v_mul_f32 v{t+5}, v{t+3}, v{t+5}",
                        f"v_cvt_pk_bf16_f32 v{t}, v{t+4}, v{t+5}",
                        f"v_lshlrev_b32 v{t+4}, 16, v{t}",
                        f"v_and_b32 v{t+5}, s50, v{t}",
                        f"v_mul_f32 v{t+4}, v{t+4}, v{t+6}",
                        f"v_mul_f32 v{t+5}, v{t+5}, v{t+7}",
                        f"v_cvt_pk_bf16_f32 v{t+8+h}, v{t+4}, v{t+5}",
                    ]
                out.append(("ST", [f"s_movk_i32 s52, {p*1536}",
                            f"buffer_store_dwordx2 {vr(t+8,2)}, v{vH}, s[16:19], s52 offen offset:{j*512+ap*256}"]))
        return out
    def emit_fill(x):
        if isinstance(x, tuple): emit_op(x)
        else: a.e(x)

    def ntile(p): return 3 if p < 3 else 2
    NG = NST * 4
    fill = []
    for gk in range(NG):
        S, q = divmod(gk, 4)
        p = S // 9; k16 = (S % 9) * 4 + q
        if q == 0:
            if S % 2 == 0: st(lg)
            n = vm.need({("D", S), ("D", S + 1)})
            if n is not None: a.e(f"s_waitcnt vmcnt({n})")
            a.e("s_barrier")
            if gk == 0:
                for g2 in range(2):
                    for j in range(3): rd(g2, j)
            vq = []
            if p == 0 and S + 2 < 9: vq += aload_ops(S + 2)
            nd = 0
            while next_dma < NST and next_dma <= S + R - 1 and nd < 2:
                d = dma_ops(next_dma)
                vq = (d + vq) if nd == 0 else (vq + d)
                next_dma += 1; nd += 1
            if 19 <= S <= 24 and 'nopf' not in ABL:
                vq.append(("PF", [f"s_add_u32 s56, s27, {(S-19)*1024}", f"s_add_u32 m0, s57, {K1_R*12544}", "s_nop 0",
                                  f"buffer_load_dwordx4 v{vPF}, s[4:7], s56 offen lds"]))
            nmf = 4 * ntile(p)
            slots = {}
            for z in range(len(vq)):
                slots.setdefault(1 + (z * (nmf - 1)) // len(vq), []).append(vq[z])
            vsched = sorted(slots.items())
            mf = 0
        if p == 0:
            n = vm.need({("A", k16)})
            if n is not None: a.e(f"s_waitcnt vmcnt({n})")
        for j in range(ntile(p)):
            n = lg.need({(gk, j)})
            if n is not None: a.e(f"s_waitcnt lgkmcnt({n})")
            c = "0" if k16 == 0 else vr(acc(j), 16)
            a.e(f"v_mfma_f32_32x32x16_bf16 {vr(acc(j),16)}, {vr(wF(gk&1,j),4)}, {vr(vA(k16),4)}, {c}")
            mf += 1
            g2 = gk + 2
            if g2 < NG and j < ntile(g2 // 36): rd(g2, j)
            while vsched and vsched[0][0] <= mf:
                for op in vsched.pop(0)[1]: emit_op(op)
            if k16 >= 1:
                for _ in range(3 if p < 3 else 4):
                    if fill: emit_fill(fill.pop(0))
        if q == 3: assert not vsched
        if k16 == 35:
            while fill: emit_fill(fill.pop(0))
            a.e("s_nop 7")
            a.e("s_nop 4")
            if p < 3:
                for j in range(3):
                    for z in range(8):
                        a.e(f"v_cvt_pk_bf16_f32 v{PK+j*8+z}, v{acc(j)+2*z}, v{acc(j)+2*z+1}")
                fill = epi_stream(p)
            else:
                for j in range(2):
                    for ag in range(4):
                        a.e(f"buffer_store_dwordx4 {vr(acc(j)+4*ag,4)}, v{vU}, s[20:23], 0 offen offset:{((ag>>1)*2+j)*1024+(ag&1)*512}")
    st.dump()
    a.lab("K1_END")
    a.e("s_endpgm")


def phaseA(a, vm_ndma):
    a.e("s_load_dwordx2 s[80:81], s[0:1], 0")
    a.e("s_load_dwordx4 s[84:87], s[0:1], 24")
    a.e("s_load_dwordx4 s[88:91], s[0:1], 40")
    a.e("s_load_dwordx2 s[82:83], s[0:1], 112")
    a.e("s_waitcnt lgkmcnt(0)")
    a.e("s_cmp_ge_u32 s32, 4")
    a.e("s_cbranch_scc1 KA_BC")
    srd(a, 92, 80, 81, 2048 * 1152)
    a.e("s_lshl_b32 s96, s37, 4")
    a.e("s_lshr_b32 s97, s36, 1")
    a.e("s_add_u32 s96, s96, s97")
    a.e("s_and_b32 s97, s36, 1")
    a.e("s_lshl_b32 s97, s97, 3")
    a.e("s_lshl_b32 s98, s32, 1")
    a.e("s_add_u32 s97, s97, s98")
    a.e("v_bfe_u32 v41, v10, 5, 1")
    a.e("v_add_u32 v41, s97, v41")
    a.e("v_and_b32 v42, 31, v10")
    a.e("s_lshr_b32 s98, s96, 5")
    a.e("s_lshl_b32 s98, s98, 9")
    a.e("s_and_b32 s99, s96, 31")
    a.e("s_add_u32 s98, s98, s99")
    a.e("v_lshl_add_u32 v43, v41, 5, s98")
    a.e("v_mul_u32_u24 v43, 0x480, v43")
    a.e("v_lshl_add_u32 v43, v42, 2, v43")
    for i in range(9):
        a.e(f"buffer_load_dword v{50+i}, v43, s[92:95], 0 offen offset:{128*i}")
    a.e("s_branch KA_DMA")
    a.lab("KA_BC")
    srd(a, 92, 84, 85, 576 * 1152)
    srd(a, 96, 86, 87, 576 * 1152)
    a.e("s_lshl_b32 s80, s2, 2")
    a.e("s_add_u32 s80, s80, s32")
    a.e("s_sub_u32 s80, s80, 4")
    a.e("s_cmp_lt_u32 s80, 162")
    a.e("s_cselect_b32 s94, s94, 0")
    a.e("s_cselect_b32 s98, s98, 0")
    a.e("s_min_u32 s81, s80, 161")
    a.e("s_mul_i32 s84, s81, 57")
    a.e("s_lshr_b32 s84, s84, 9")
    a.e("s_mul_i32 s85, s84, 9")
    a.e("s_sub_u32 s85, s81, s85")
    a.e("s_lshl_b32 s85, s85, 6")
    a.e("v_add_u32 v42, s85, v10")
    a.e("v_mul_u32_u24 v43, 0x480, v42")
    a.e("s_lshl_b32 s85, s84, 6")
    a.e("v_add_u32 v43, s85, v43")
    for q in range(4):
        a.e(f"buffer_load_dwordx4 {vr(112+4*q,4)}, v43, s[92:95], 0 offen offset:{16*q}")
        a.e(f"buffer_load_dwordx4 {vr(128+4*q,4)}, v43, s[96:99], 0 offen offset:{16*q}")
    a.e(f"s_mul_i32 s85, s84, {32*9216}")
    a.e("v_lshlrev_b32 v44, 2, v42")
    a.e("v_add_u32 v44, s85, v44")
    srd(a, 92, 88, 89, 576 * 1152)
    srd(a, 96, 90, 91, 576 * 1152)
    a.e("s_sub_u32 s86, 255, s2")
    a.e("s_lshl_b32 s86, s86, 2")
    a.e("s_add_u32 s86, s86, s32")
    a.e("s_sub_u32 s86, s86, 4")
    a.e("s_mul_i32 s87, s86, 3641")
    a.e("s_lshr_b32 s87, s87, 16")
    a.e("s_mul_i32 s88, s87, 18")
    a.e("s_sub_u32 s88, s86, s88")
    a.e("s_min_u32 s87, s87, 35")
    a.e("v_and_b32 v45, 15, v10")
    a.e("v_bfe_u32 v46, v10, 4, 2")
    a.e("s_lshl_b32 s89, s88, 2")
    a.e("v_add_u32 v46, s89, v46")
    a.e("s_lshl_b32 s89, s87, 4")
    a.e("v_add_u32 v47, s89, v45")
    a.e("v_mul_u32_u24 v47, 0x480, v47")
    a.e("v_lshl_add_u32 v47, v46, 4, v47")
    a.e("buffer_load_dwordx4 v[56:59], v47, s[92:95], 0 offen")
    a.e("buffer_load_dwordx4 v[60:63], v47, s[96:99], 0 offen")
    a.e("s_mul_i32 s89, s87, 36864")
    a.e("v_lshlrev_b32 v47, 9, v46")
    a.e("v_lshl_add_u32 v47, v45, 4, v47")
    a.e("v_add_u32 v47, s89, v47")
    a.lab("KA_DMA")

def phaseA2(a, ndma):
    a.e("s_cmp_ge_u32 s32, 4")
    a.e("s_cbranch_scc1 KA_BC2")
    srd_ws(a, 92, 30, OFF_XN, 2048 * 1152)
    a.e("s_mul_i32 s98, s96, 18432")
    a.e("v_lshlrev_b32 v44, 4, v41")
    a.e("v_add_u32 v44, s98, v44")
    a.e("v_lshrrev_b32 v45, 2, v42")
    a.e("v_lshl_add_u32 v44, v45, 8, v44")
    a.e("v_and_b32 v45, 3, v42")
    a.e("v_lshl_add_u32 v44, v45, 2, v44")
    a.e("s_mov_b32 s99, 0xffff0000")
    a.e(f"s_waitcnt vmcnt({ndma})")
    X = 60
    for i in range(9):
        a.e(f"v_lshlrev_b32 v{X+2*i}, 16, v{50+i}")
        a.e(f"v_and_b32 v{X+1+2*i}, s99, v{50+i}")
    a.e(f"v_add_f32 v84, v{X}, v{X+1}")
    a.e(f"v_add_f32 v85, v{X+2}, v{X+3}")
    for i in range(2, 9):
        a.e(f"v_add_f32 v{84+(i&1)}, v{84+(i&1)}, v{X+2*i}")
        a.e(f"v_add_f32 v{84+(i&1)}, v{84+(i&1)}, v{X+1+2*i}")
    a.e("v_add_f32 v84, v84, v85")
    def reduce32(r):
        for off in (0x041F, 0x081F, 0x101F, 0x201F, 0x401F):
            a.e(f"ds_swizzle_b32 v89, v{r} offset:{off}")
            a.e("s_waitcnt lgkmcnt(0)")
            a.e(f"v_add_f32 v{r}, v{r}, v89")
    reduce32(84)
    a.e(f"v_mul_f32 v85, {f32(1.0/576)}, v84")
    a.e("v_mov_b32 v86, 0")
    a.e("v_mov_b32 v87, 0")
    for i in range(18):
        a.e(f"v_sub_f32 v88, v{X+i}, v85")
        a.e(f"v_fma_f32 v{86+(i&1)}, v88, v88, v{86+(i&1)}")
    a.e("v_add_f32 v86, v86, v87")
    reduce32(86)
    a.e(f"v_mul_f32 v86, {f32(1.0/576)}, v86")
    a.e("v_cvt_pk_bf16_f32 v87, v85, v86")
    a.e("v_lshlrev_b32 v85, 16, v87")
    a.e("v_and_b32 v86, s99, v87")
    a.e(f"v_add_f32 v86, {f32(1e-5)}, v86")
    a.e("v_cvt_pk_bf16_f32 v87, v86, v86")
    a.e("v_lshlrev_b32 v86, 16, v87")
    a.e("v_sqrt_f32 v86, v86")
    a.e("s_nop 0")
    a.e("v_cvt_pk_bf16_f32 v87, v86, v86")
    a.e("v_lshlrev_b32 v86, 16, v87")
    a.e("v_rcp_f32 v88, v86")
    a.e("s_nop 0")
    for i in range(9):
        x0, x1 = X + 2*i, X + 1 + 2*i
        a.e(f"v_sub_f32 v{x0}, v{x0}, v85")
        a.e(f"v_sub_f32 v{x1}, v{x1}, v85")
        a.e(f"v_cvt_pk_bf16_f32 v87, v{x0}, v{x1}")
        a.e(f"v_lshlrev_b32 v{x0}, 16, v87")
        a.e(f"v_and_b32 v{x1}, s99, v87")
        a.e(f"v_mul_f32 v90, v{x0}, v88")
        a.e(f"v_mul_f32 v91, v{x1}, v88")
        a.e(f"v_fma_f32 v92, -v90, v86, v{x0}")
        a.e(f"v_fma_f32 v93, -v91, v86, v{x1}")
        a.e(f"v_fma_f32 v90, v92, v88, v90")
        a.e(f"v_fma_f32 v91, v93, v88, v91")
        a.e(f"v_cvt_pk_bf16_f32 v{50+i}, v90, v91")
        a.e(f"s_movk_i32 s98, {i*2048}")
        a.e(f"buffer_store_dword v{50+i}, v44, s[92:95], s98 offen")
    a.e("s_branch KA_SIG")
    a.lab("KA_BC2")

    srd_ws(a, 92, 30, OFF_WB, 576 * 9216)
    srd_ws(a, 96, 30, OFF_CI, 576 * 2304)
    a.e("s_cmp_lt_u32 s80, 162")
    a.e("s_cselect_b32 s94, s94, 0")
    a.e("s_cmp_lt_u32 s86, 648")
    a.e("s_cselect_b32 s98, s98, 0")
    a.e("s_mov_b32 s84, 0x05040100")
    a.e("s_mov_b32 s85, 0x07060302")
    a.e("s_mov_b32 s87, 9216")
    a.e(f"s_waitcnt vmcnt({ndma})")
    for i in range(16):
        a.e(f"v_perm_b32 v{144+2*i}, v{128+i}, v{112+i}, s84")
        a.e(f"v_perm_b32 v{145+2*i}, v{128+i}, v{112+i}, s85")
    for i in range(32):
        a.e(f"buffer_store_dword v{144+i}, v44, s[92:95], 0 offen")
        if i < 31: a.e("v_add_u32 v44, s87, v44")
    for i in range(4):
        a.e(f"v_perm_b32 v{72+2*i}, v{60+i}, v{56+i}, s84")
        a.e(f"v_perm_b32 v{73+2*i}, v{60+i}, v{56+i}, s85")
    a.e("buffer_store_dwordx4 v[72:75], v47, s[96:99], 0 offen")
    a.e("buffer_store_dwordx4 v[76:79], v47, s[96:99], 0 offen offset:256")
    a.e("s_barrier")
    a.e("s_branch KA_WAIT")
    a.lab("KA_SIG")
    a.e("s_waitcnt vmcnt(0)")
    a.e("s_barrier")
    a.e("s_cmp_lg_u32 s32, 0")
    a.e("s_cbranch_scc1 KA_WAIT")
    srd(a, 92, 82, 83, 256)
    a.e("s_lshl_b32 s96, s37, 2")
    a.e("v_mov_b32 v41, s96")
    a.e("v_mov_b32 v42, 1")
    a.e("v_mov_b32 v43, 32")
    a.e("s_mov_b64 exec, 1")
    a.e("buffer_atomic_add v42, v41, s[92:95], 0 offen sc1")
    a.e("s_mov_b32 s96, 0")
    a.lab("KA_POLL")
    a.e("s_sleep 2")
    a.e("buffer_load_dword v42, v41, s[92:95], 0 offen sc1")
    a.e("s_waitcnt vmcnt(0)")
    a.e("v_cmp_lt_u32 vcc, v42, v43")
    a.e("s_add_u32 s96, s96, 1")
    a.e("s_cmp_ge_u32 s96, 200000")
    a.e("s_cbranch_scc1 KA_PDONE")
    a.e("s_cbranch_vccnz KA_POLL")
    a.lab("KA_PDONE")
    a.e("s_mov_b64 exec, -1")
    a.lab("KA_WAIT")
    a.e("s_barrier")

def gen_k1_16(a):
    K1_STAGE = 12288
    R = K1_R
    kernel_head(a, "k1_kernel")
    vA = lambda rt, ks: 112 + (rt * 18 + ks) * 4
    accG = lambda rt, j: 64 + (rt * 3 + j) * 4
    accU = lambda rt, j: 88 + (rt * 3 + j) * 4
    wF = lambda m, j: 40 + (m * 3 + j) * 4
    vLds = [1, 2]; vDma = [3, 4]; vH = 5; vU = 0
    PK = 6
    TMP = 30
    vPF = 31
    st = Stamper(a, 'stamp1', first=56 if False else 80)
    a.e("s_cmp_ge_u32 s2, 256")
    a.e("s_cbranch_scc1 K1_END")
    st()
    a.e("s_load_dwordx4 s[4:7], s[0:1], 80")
    a.e("s_load_dwordx2 s[30:31], s[0:1], 120")
    a.e("s_load_dwordx2 s[28:29], s[0:1], 96")
    a.e("v_lshrrev_b32 v10, 6, v0")
    a.e("s_nop 0")
    a.e("v_readfirstlane_b32 s32, v10")
    a.e("s_and_b32 s33, s2, 7")
    a.e("s_lshr_b32 s34, s2, 3")
    a.e("s_and_b32 s35, s34, 3")
    a.e("s_lshl_b32 s36, s33, 2")
    a.e("s_add_u32 s36, s36, s35")
    a.e("s_lshr_b32 s37, s34, 2")
    a.e("s_mul_i32 s38, s33, 3")
    a.e("s_min_u32 s39, s35, 2")
    a.e("s_add_u32 s38, s38, s39")
    a.e("s_waitcnt lgkmcnt(0)")
    srd_ws(a, 8, 30, OFF_XN, 2048 * 1152)
    srd_ws(a, 16, 30, OFF_H, 2048 * 9216)
    srd_ws(a, 20, 30, OFF_U, 2048 * 4608)
    a.e("s_cmp_lt_u32 s35, 3")
    a.e(f"s_cselect_b32 s22, {2048*4608}, 0")
    a.e(f"s_add_u32 s24, s30, {OFF_WB}")
    a.e("s_addc_u32 s25, s31, 0")
    a.e("s_cmp_lt_u32 s35, 3")
    a.e(f"s_cselect_b32 s26, {576*9216}, 0")
    a.e("s_cmp_lt_u32 s32, 4")
    a.e("s_cselect_b32 s26, s26, 0")
    a.e("s_cselect_b32 s12, s4, s6")
    a.e("s_cselect_b32 s13, s5, s7")
    a.e(f"s_mov_b32 s14, {576*9216}")
    a.e("s_mov_b32 s15, 0x00020000")
    a.e("v_and_b32 v10, 63, v0")
    a.e("v_lshrrev_b32 v11, 4, v10")
    a.e("v_and_b32 v12, 15, v10")
    a.e("s_lshl_b32 s39, s37, 4")
    a.e("s_lshl_b32 s40, s32, 1")
    a.e("s_add_u32 s39, s39, s40")
    a.e("v_lshlrev_b32 v14, 4, v10")
    a.e("s_mul_i32 s40, s39, 18432")
    a.e("s_mul_i32 s41, s36, 288")
    a.e("s_mul_i32 s44, s38, 96")
    a.e("v_lshrrev_b32 v16, 1, v11")
    a.e("v_and_b32 v17, 1, v11")
    a.e("v_lshlrev_b32 v16, 4, v16")
    a.e("v_lshl_add_u32 v16, v17, 2, v16")
    a.e("v_bfe_u32 v17, v10, 2, 2")
    a.e("v_add_u32 v16, v16, v17")
    a.e("v_mul_u32_u24 v16, 96, v16")
    a.e("v_and_b32 v17, 3, v10")
    a.e(f"v_lshl_add_u32 v{vLds[0]}, v17, 3, v16")
    a.e(f"v_add_u32 v{vLds[1]}, {4*K1_STAGE}, v{vLds[0]}")
    a.e("s_and_b32 s45, s32, 3")
    a.e("s_mul_i32 s46, s45, 96")
    for i in range(2):
        a.e(f"v_add_u32 v16, s46, v10")
        if i: a.e(f"v_add_u32 v16, {64*i}, v16")
        a.e("v_mul_u32_u24 v17, 171, v16")
        a.e("v_lshrrev_b32 v17, 10, v17")
        a.e("v_mul_u32_u24 v18, 6, v17")
        a.e("v_sub_u32 v18, v16, v18")
        a.e("v_and_b32 v19, 0x33, v17")
        a.e("v_bfe_u32 v20, v17, 2, 1")
        a.e("v_lshl_add_u32 v19, v20, 3, v19")
        a.e("v_bfe_u32 v20, v17, 3, 1")
        a.e("v_lshl_add_u32 v19, v20, 2, v19")
        a.e("v_mul_u32_u24 v19, 0x2400, v19")
        a.e(f"v_lshl_add_u32 v{vDma[i]}, v18, 4, v19")
    a.e("s_lshr_b32 s47, s32, 2")
    a.e("s_mul_i32 s47, s47, 6144")
    a.e("s_mul_i32 s48, s45, 1536")
    a.e("s_add_u32 s47, s47, s48")
    a.e("s_mul_i32 s42, s39, 147456")
    a.e("s_mul_i32 s43, s36, 4608")
    a.e("s_add_u32 s42, s42, s43")
    a.e("v_lshrrev_b32 v16, 1, v11")
    a.e("v_lshlrev_b32 v16, 8, v16")
    a.e("v_lshl_add_u32 v16, v12, 4, v16")
    a.e("v_and_b32 v17, 1, v11")
    a.e("v_lshl_add_u32 v16, v17, 3, v16")
    a.e(f"v_add_u32 v{vH}, s42, v16")
    a.e("s_mul_i32 s42, s39, 72")
    a.e("s_mul_i32 s43, s38, 3")
    a.e("s_add_u32 s42, s42, s43")
    a.e("s_lshl_b32 s42, s42, 10")
    a.e(f"v_add_u32 v{vU}, s42, v14")
    a.e("s_mov_b32 s50, 0xffff0000")
    a.e("s_mov_b32 s51, 73728")
    srd(a, 4, 28, 29, 4608 * 1152)
    a.e("s_lshr_b32 s27, s33, 1")
    a.e(f"s_mul_i32 s27, s27, {1152*1152}")
    a.e("s_mul_i32 s56, s34, 41472")
    a.e("s_add_u32 s27, s27, s56")
    a.e("s_mul_i32 s56, s32, 5184")
    a.e("s_add_u32 s27, s27, s56")
    a.e("s_lshl_b32 s57, s32, 10")
    a.e("v_lshlrev_b32 v31, 4, v10")

    vm = Cnt("vm", 63); lg = Cnt("lgkm", 15)
    NST = 36
    ORD = [3, 0, 1, 2] if 'ssmfirst' in ABL else [0, 1, 2, 3]
    PH = lambda S: ORD[S // 9]
    a.e("s_lshl_b32 s53, s35, 1")
    a.e("s_add_u32 s53, s53, s37")
    a.e("s_cmp_ge_u32 s53, 9")
    a.e("s_cselect_b32 s54, 9, 0")
    a.e("s_sub_u32 s53, s53, s54")
    if 'norot' in ABL: a.e("s_mov_b32 s53, 0")
    for S in range(9):
        a.e(f"s_add_u32 s54, s53, {S}")
        a.e("s_cmp_ge_u32 s54, 9")
        a.e("s_cselect_b32 s55, 9, 0")
        a.e("s_sub_u32 s54, s54, s55")
        a.e(f"s_mul_i32 s{60+S}, s54, {64*9216}")
        a.e(f"s_lshl_b32 s{70+S}, s54, 11")
        a.e(f"s_add_u32 s{70+S}, s{70+S}, s40")
    def dma_ops(S):
        ops = []
        for i in range(2):
            L = []
            p = PH(S); stg = S % 9
            if stg == 0 and i == 0 and (p == 3 or (S > 0 and PH(S - 1) == 3)):
                for r in range(3):
                    L += [f"s_mov_b32 s58, s{12+r}", f"s_mov_b32 s{12+r}, s{24+r}", f"s_mov_b32 s{24+r}, s58"]
            if p < 3:
                L.append(f"s_add_u32 s49, s41, s{60+stg}")
                if p: L.append(f"s_add_u32 s49, s49, {p*96}")
            else:
                L.append(f"s_add_u32 s49, s44, s{60+stg}")
            if i == 1: L.append("s_mov_b32 exec_hi, 0")
            L.append(f"s_add_u32 m0, s47, {(S % R)*K1_STAGE + i*1024}")
            L.append("s_nop 0")
            L.append(f"buffer_load_dwordx4 v{vDma[i]}, s[12:15], s49 offen lds")
            if i == 1: L.append("s_mov_b32 exec_hi, -1")
            ops.append((("D", S), L))
        return ops
    def aload_ops(ks):
        ops = []
        for rt in range(2):
            L = [f"s_add_u32 s49, s{70+ks//2}, {(rt*18+(ks&1))*1024}",
                 f"buffer_load_dwordx4 {vr(vA(rt,ks),4)}, v14, s[8:11], s49 offen" + (" sc1" if MERGE and "anosc1" not in ABL else "")]
            ops.append((("A", ks), L))
        return ops
    def emit_op(op):
        tag, L = op
        for x in L: a.e(x)
        vm.issue(tag)
    if MERGE:
        NPRE = 4
        phaseA(a, 0)
        for S in range(NPRE):
            for op in dma_ops(S): emit_op(op)
        phaseA2(a, 2 * NPRE)
        vm.q = []
        for S in range(2):
            for op in aload_ops(2 * S) + aload_ops(2 * S + 1): emit_op(op)
        next_dma = NPRE
    else:
        for S in range(2):
            for op in dma_ops(S) + aload_ops(2 * S) + aload_ops(2 * S + 1): emit_op(op)
        next_dma = 2

    def rd(S, half, m, j):
        base = (S % R) * K1_STAGE + m * 6144 + half * 3072 + j * 32
        vb = vLds[0]
        if (S % R) >= 4:
            base -= 4 * K1_STAGE; vb = vLds[1]
        w = wF(m, j)
        a.e(f"ds_read_b64_tr_b16 {vr(w,2)}, v{vb} offset:{base}")
        a.e(f"ds_read_b64_tr_b16 {vr(w+2,2)}, v{vb} offset:{base+768}")
        lg.issue((m, j)); lg.issue((m, j))

    def epi_stream(p, t=None, pk=None):
        out = []
        t = TMP
        for rt in range(2):
            for j in range(3):
                pg = PK + (rt * 3 + j) * 2; pu = PK + 12 + (rt * 3 + j) * 2
                for h in range(2):
                    out += [
                        f"v_lshlrev_b32 v{t+2}, 16, v{pg+h}",
                        f"v_and_b32 v{t+3}, s50, v{pg+h}",
                        f"v_mul_f32 v{t+4}, {f32(-LOG2E)}, v{t+2}",
                        f"v_mul_f32 v{t+5}, {f32(-LOG2E)}, v{t+3}",
                        f"v_exp_f32 v{t+4}, v{t+4}",
                        f"v_exp_f32 v{t+5}, v{t+5}",
                        f"v_lshlrev_b32 v{t+6}, 16, v{pu+h}",
                        f"v_add_f32 v{t+4}, 1.0, v{t+4}",
                        f"v_add_f32 v{t+5}, 1.0, v{t+5}",
                        f"v_rcp_f32 v{t+4}, v{t+4}",
                        f"v_rcp_f32 v{t+5}, v{t+5}",
                        f"v_and_b32 v{t+7}, s50, v{pu+h}",
                        f"v_mul_f32 v{t+4}, v{t+2}, v{t+4}",
                        f"v_mul_f32 v{t+5}, v{t+3}, v{t+5}",
                        f"v_cvt_pk_bf16_f32 v{t}, v{t+4}, v{t+5}",
                        f"v_lshlrev_b32 v{t+4}, 16, v{t}",
                        f"v_and_b32 v{t+5}, s50, v{t}",
                        f"v_mul_f32 v{t+4}, v{t+4}, v{t+6}",
                        f"v_mul_f32 v{t+5}, v{t+5}, v{t+7}",
                        f"v_cvt_pk_bf16_f32 v{t+8+h}, v{t+4}, v{t+5}",
                    ]
                out.append(("ST", [f"s_mov_b32 s52, {rt*147456 + p*1536}",
                            f"buffer_store_dwordx2 {vr(t+8,2)}, v{vH}, s[16:19], s52 offen offset:{j*512}"]))
        return out
    def emit_fill(x):
        if isinstance(x, tuple): emit_op(x)
        else: a.e(x)

    steps = []
    for S in range(NST):
        for half in range(2):
            steps.append((S, half, PH(S), (S % 9) * 2 + half))
    def mats(p): return (0, 1) if p < 3 else (0,)
    fill = []
    vq = []
    for idx, (S, half, p, ks) in enumerate(steps):
        if half == 0:
            assert not vq
            if S % 2 == 0: st(lg)
            n = vm.need({("D", S), ("D", S + 1)})
            if n is not None: a.e(f"s_waitcnt vmcnt({n})")
            if MERGE and S == 4:
                a.e("s_cmp_lt_u32 s32, 4")
                a.e("s_cbranch_scc1 KS_DONE")
                srd(a, 92, 82, 83, 256)
                a.e("s_and_b32 s97, s2, 7")
                a.e("s_lshl_b32 s97, s97, 2")
                a.e("s_add_u32 s97, s97, 32")
                a.e("v_mov_b32 v30, s97")
                a.e("v_mov_b32 v32, 1")
                a.e("s_mov_b64 exec, 1")
                a.e("buffer_atomic_add v32, v30, s[92:95], 0 offen sc1")
                a.e("s_mov_b64 exec, -1")
                a.e("s_waitcnt vmcnt(0)")
                a.lab("KS_DONE")
            if MERGE and S == 18:
                a.e("s_cmp_lg_u32 s32, 0")
                a.e("s_cbranch_scc1 KB_DONE")
                srd(a, 92, 82, 83, 256)
                a.e("s_mov_b32 s96, 0")
                a.e("v_mbcnt_lo_u32_b32 v30, -1, 0")
                a.e("v_lshlrev_b32 v30, 2, v30")
                a.e("s_mov_b64 exec, 0xff")
                a.lab("KB_POLL")
                a.e("buffer_load_dword v32, v30, s[92:95], 0 offen offset:32 sc1")
                a.e("s_waitcnt vmcnt(0)")
                a.e("v_cmp_gt_u32 vcc, 128, v32")
                a.e("s_add_u32 s96, s96, 1")
                a.e("s_cmp_ge_u32 s96, 200000")
                a.e("s_cbranch_scc1 KB_PD")
                a.e("s_cbranch_vccnz KB_POLL")
                a.lab("KB_PD")
                a.e("s_mov_b64 exec, -1")
                a.lab("KB_DONE")
            a.e("s_barrier")
            if idx == 0:
                for m in mats(p):
                    for j in range(3): rd(S, 0, m, j)
            if S + 2 < 9:
                vq += aload_ops(2 * (S + 2)) + aload_ops(2 * (S + 2) + 1)
            nd = 0
            while next_dma < NST and next_dma <= S + R - 1 and nd < 2:
                d = dma_ops(next_dma)
                if nd == 0: vq = d + vq
                else: vq = vq + d
                next_dma += 1; nd += 1
            if 19 <= S <= 24 and 'nopf' not in ABL:
                vq.append(("PF", [f"s_add_u32 s56, s27, {(S-19)*1024}", f"s_add_u32 m0, s57, {K1_R*12544}", "s_nop 0",
                                  f"buffer_load_dwordx4 v{vPF}, s[4:7], s56 offen lds"]))
            nmf = 24 if p < 3 else 12
            slots = {}
            for q in range(len(vq)):
                slots.setdefault(1 + (q * (nmf - 2)) // len(vq), []).append(q)
            vsched = [(k, [vq[q] for q in v]) for k, v in sorted(slots.items())]
            vq = []
            mf = 0
        if S < 9:
            n = vm.need({("A", ks)})
            if n is not None: a.e(f"s_waitcnt vmcnt({n})")
        nxt = steps[idx + 1] if idx + 1 < len(steps) else None
        if nxt is not None and p == 3 and nxt[2] < 3:
            for j in range(3): rd(nxt[0], nxt[1], 1, j)
        for m in mats(p):
            for j in range(3):
                n = lg.need({(m, j)})
                if n is not None: a.e(f"s_waitcnt lgkmcnt({n})")
                for rt in range(2):
                    acc = (accG if m == 0 else accU)(rt, j)
                    c = "0" if ks == 0 else vr(acc, 4)
                    a.e(f"v_mfma_f32_16x16x32_bf16 {vr(acc,4)}, {vr(wF(m,j),4)}, {vr(vA(rt,ks),4)}, {c}")
                    mf += 1
                    while vsched and vsched[0][0] <= mf:
                        for op in vsched.pop(0)[1]: emit_op(op)
                    if ks >= 1 or p == 3:
                        nf = (2 if rt == 0 else 1) if p < 3 else 3
                        for _ in range(nf):
                            if fill: emit_fill(fill.pop(0))
                if nxt is not None and m in mats(nxt[2]):
                    rd(nxt[0], nxt[1], m, j)
        if half == 1: assert not vsched
        if ks == 17:
            while fill: emit_fill(fill.pop(0))
            a.e("s_nop 7")
            a.e("s_nop 1")
            if p < 3:
                for rt in range(2):
                    for j in range(3):
                        for h in range(2):
                            a.e(f"v_cvt_pk_bf16_f32 v{PK+(rt*3+j)*2+h}, v{accG(rt,j)+2*h}, v{accG(rt,j)+2*h+1}")
                            a.e(f"v_cvt_pk_bf16_f32 v{PK+12+(rt*3+j)*2+h}, v{accU(rt,j)+2*h}, v{accU(rt,j)+2*h+1}")
                fill = epi_stream(p)
                if nxt is None:
                    while fill: emit_fill(fill.pop(0))
            else:
                for rt in range(2):
                    for j in range(3):
                        so = "0" if rt == 0 else "s51"
                        a.e(f"buffer_store_dwordx4 {vr(accG(rt,j),4)}, v{vU}, s[20:23], {so} offen offset:{j*1024}")
                        vm.issue("ST")
                a.e("s_nop 1")
    st.dump()
    a.lab("K1_END")
    a.e("s_endpgm")

def main():
    a = Asm()
    hdr = open(f"cdna_kernels/{NAME}.s.ref").read().split("\n")
    for l in hdr:
        if l.startswith("; @launch") or l.startswith("; Override") or l.startswith("; grid=ceil"): continue
        if not l.startswith(";"): break
        a.raw(l)
    import gen2
    launches = ([] if MERGE else [("k0_kernel", 580 if 'nopf0' in ABL else 836, 256, 0)]) + [("k1_kernel", 256, 512, K1_R * K1_STAGE + 8192)] + gen2.launches()
    for k, g, b, l in launches:
        a.raw(f"; @launch kernel={k} grid=({g},1,1) block=({b},1,1) lds={l}")
    a.raw('.amdgcn_target "amdgcn-amd-amdhsa--gfx950"')
    a.raw(".text")
    a.sc1 = 'k0sc1' in ABL
    if not MERGE: gen_k0(a)
    a.sc1 = True
    (gen_k1 if M32 else gen_k1_16)(a)
    kds = ([] if MERGE else [kd("k0_kernel", 64)]) + [kd("k1_kernel", 256, 102)]
    kds += gen2.gen(a)
    a.raw('.section .rodata,"a"')
    for k in kds: a.raw(k)
    out = sys.argv[1] if len(sys.argv) > 1 else f"cdna_kernels/{NAME}.s"
    open(out, "w").write("\n".join(a.L) + "\n")

if __name__ == "__main__":
    main()
```

```python
from common import *

K2_R = 4
K2_STAGE = 18432
K2_NSCAN = 144
def launches():
    return [("k2_kernel", 256 + K2_NSCAN, 256, K2_R * K2_STAGE), ("k3_kernel", 256, 256, 73728)]

def cmul(a, dr, di, ar, ai, br, bi, t):
    a.e(f"v_mul_f32 v{t}, v{ai}, v{bi}")
    a.e(f"v_mul_f32 v{t+1}, v{ar}, v{bi}")
    a.e(f"v_fma_f32 v{t}, v{ar}, v{br}, -v{t}")
    a.e(f"v_fma_f32 v{di}, v{ai}, v{br}, v{t+1}")
    a.e(f"v_mov_b32 v{dr}, v{t}")

def gen_k2(a):
    R = K2_R
    kernel_head(a, "k2_kernel")
    st = Stamper(a, 'stamp2', first=62)
    a.e(f"s_cmp_ge_u32 s2, {256+K2_NSCAN}")
    a.e("s_cbranch_scc1 K2_END")
    st()
    a.e("s_load_dwordx2 s[4:5], s[0:1], 96")
    a.e("s_load_dwordx2 s[30:31], s[0:1], 120")
    a.e("s_load_dwordx4 s[52:55], s[0:1], 8")
    a.e("s_load_dwordx2 s[56:57], s[0:1], 56")
    a.e("v_lshrrev_b32 v12, 6, v0")
    a.e("s_nop 0")
    a.e("v_readfirstlane_b32 s32, v12")
    if 'scanlast' in ABL:
        a.e("s_cmp_ge_u32 s2, 256")
        a.e("s_cbranch_scc1 K2_SCAN")
    else:
        a.e(f"s_cmp_lt_u32 s2, {K2_NSCAN}")
        a.e("s_cbranch_scc1 K2_SCAN")
        a.e(f"s_sub_u32 s2, s2, {K2_NSCAN}")
    acc = lambda rt, j: 184 + (rt * 9 + j) * 4
    wF = lambda b, j: 112 + (b * 9 + j) * 4
    HD = 8
    hF = lambda slot, rt: 48 + (slot * 2 + rt) * 4
    vLds = [1, 2]; vDma = [3, 4, 5, 6, 7]; vL16 = 8
    a.e("s_and_b32 s33, s2, 7")
    a.e("s_lshr_b32 s34, s2, 3")
    a.e("s_lshr_b32 s35, s33, 1")
    a.e("s_and_b32 s36, s33, 1")
    a.e("s_lshl_b32 s36, s36, 3")
    a.e("s_lshr_b32 s37, s34, 2")
    a.e("s_add_u32 s36, s36, s37")
    a.e("s_and_b32 s37, s34, 3")
    a.e("s_waitcnt lgkmcnt(0)")
    srd(a, 12, 4, 5, 4608 * 1152)
    srd_ws(a, 8, 30, OFF_H, 2048 * 9216)
    srd_ws(a, 16, 30, OFF_PART, 4 * 2048 * 2304)
    a.e("v_and_b32 v12, 63, v0")
    a.e("v_lshrrev_b32 v13, 4, v12")
    a.e(f"v_lshlrev_b32 v{vL16}, 4, v12")
    a.e("s_lshl_b32 s39, s36, 3")
    a.e("s_lshl_b32 s40, s32, 1")
    a.e("s_add_u32 s39, s39, s40")
    a.e("s_mul_i32 s41, s39, 144")
    a.e("s_mul_i32 s42, s35, 36")
    a.e("s_add_u32 s41, s41, s42")
    a.e("s_lshl_b32 s41, s41, 10")
    a.e("s_lshl_b32 s43, s35, 7")
    a.e("s_add_u32 s43, s43, s39")
    a.e("s_mul_i32 s43, s43, 36")
    a.e("s_mul_i32 s44, s37, 9")
    a.e("s_add_u32 s43, s43, s44")
    a.e("s_lshl_b32 s43, s43, 10")
    a.e("v_lshrrev_b32 v16, 1, v13")
    a.e("v_and_b32 v17, 1, v13")
    a.e("v_lshlrev_b32 v16, 4, v16")
    a.e("v_lshl_add_u32 v16, v17, 2, v16")
    a.e("v_bfe_u32 v17, v12, 2, 2")
    a.e("v_add_u32 v16, v16, v17")
    a.e("v_mul_u32_u24 v16, 288, v16")
    a.e("v_and_b32 v17, 3, v12")
    a.e(f"v_lshl_add_u32 v{vLds[0]}, v17, 3, v16")
    a.e(f"v_add_u32 v{vLds[1]}, {2*K2_STAGE}, v{vLds[0]}")
    a.e("s_mul_i32 s46, s32, 288")
    a.e("s_movk_i32 s45, 3641")
    for i in range(5):
        a.e(f"v_add_u32 v16, s46, v12")
        if i: a.e(f"v_add_u32 v16, {64*i}, v16")
        a.e("v_mul_lo_u32 v17, v16, s45")
        a.e("v_lshrrev_b32 v17, 16, v17")
        a.e("v_mul_u32_u24 v18, 18, v17")
        a.e("v_sub_u32 v18, v16, v18")
        a.e("v_and_b32 v19, 0x33, v17")
        a.e("v_bfe_u32 v20, v17, 2, 1")
        a.e("v_lshl_add_u32 v19, v20, 3, v19")
        a.e("v_bfe_u32 v20, v17, 3, 1")
        a.e("v_lshl_add_u32 v19, v20, 2, v19")
        a.e("v_mul_u32_u24 v19, 0x480, v19")
        a.e(f"v_lshl_add_u32 v{vDma[i]}, v18, 4, v19")
    a.e("s_mul_i32 s47, s32, 4608")
    a.e(f"s_mul_i32 s48, s35, {1152*1152}")
    a.e("s_mul_i32 s49, s37, 288")
    a.e("s_add_u32 s48, s48, s49")
    vm = Cnt("vm", 63); lg = Cnt("lgkm", 15)
    NST = 18
    a.e("s_lshr_b32 s58, s34, 2")
    a.e("s_lshl_b32 s58, s58, 1")
    a.e("s_mul_i32 s59, s37, 5")
    a.e("s_add_u32 s58, s58, s59")
    a.e("s_cmp_ge_u32 s58, 18")
    a.e("s_cselect_b32 s59, 18, 0")
    a.e("s_sub_u32 s58, s58, s59")
    if 'norot' in ABL: a.e("s_mov_b32 s58, 0")
    def rotS(S, dst):
        a.e(f"s_add_u32 s{dst}, s58, {S}")
        a.e(f"s_cmp_ge_u32 s{dst}, 18")
        a.e(f"s_cselect_b32 s59, 18, 0")
        a.e(f"s_sub_u32 s{dst}, s{dst}, s59")
    if 'k2unroll' in ABL:
        def rotL(S, dst):
            return [f"s_add_u32 s{dst}, s58, {S}", f"s_cmp_ge_u32 s{dst}, 18", f"s_cselect_b32 s59, 18, 0", f"s_sub_u32 s{dst}, s{dst}, s59"]
        def dma_ops(S):
            ops = []
            for i in range(5):
                L = []
                if i == 0:
                    L += rotL(S, 57) + [f"s_mul_i32 s57, s57, {64*1152}", "s_add_u32 s49, s48, s57"]
                if i == 4: L.append("s_mov_b32 exec_hi, 0")
                L += [f"s_add_u32 m0, s47, {(S % R)*K2_STAGE + i*1024}", "s_nop 0",
                      f"buffer_load_dwordx4 v{vDma[i]}, s[12:15], s49 offen lds"]
                if i == 4: L.append("s_mov_b32 exec_hi, -1")
                ops.append((("D", S), L))
            return ops
        def hload_ops(kk):
            ops = []
            for rt in range(2):
                L = []
                if rt == 0:
                    L += rotL(kk // 2, 56) + ["s_lshl_b32 s56, s56, 11", "s_add_u32 s56, s56, s41"]
                L += [f"s_add_u32 s50, s56, {(rt*144+(kk&1))*1024}",
                      f"buffer_load_dwordx4 {vr(hF(kk % HD, rt),4)}, v{vL16}, s[8:11], s50 offen"]
                ops.append((("H", kk), L))
            return ops
        def emit_op(op):
            for x in op[1]: a.e(x)
            vm.issue(op[0])
        for op in dma_ops(0) + hload_ops(0) + hload_ops(1) + dma_ops(1) + hload_ops(2) + hload_ops(3): emit_op(op)
        next_dma = 2; next_h = 4
        def rd(kk, j):
            S, half = divmod(kk, 2)
            base = (S % R) * K2_STAGE + half * 32 * 288 + j * 32
            vb = vLds[0]
            if (S % R) >= 2:
                base -= 2 * K2_STAGE; vb = vLds[1]
            w = wF(kk & 1, j)
            a.e(f"ds_read_b64_tr_b16 {vr(w,2)}, v{vb} offset:{base}")
            a.e(f"ds_read_b64_tr_b16 {vr(w+2,2)}, v{vb} offset:{base+8*288}")
            lg.issue((kk, j)); lg.issue((kk, j))
        NK = 36
        for kk in range(NK):
            S, half = divmod(kk, 2)
            if half == 0:
                st(lg)
                n = vm.need({("D", S), ("D", S + 1)})
                if n is not None: a.e(f"s_waitcnt vmcnt({n})")
                a.e("s_barrier")
                if kk == 0:
                    for j in range(9): rd(0, j)
            vq = []
            nh = 0
            while next_h < NK and next_h <= kk - 1 + HD and nh < 2:
                vq += hload_ops(next_h); next_h += 1; nh += 1
            if next_dma < NST and next_dma <= S + R - 1 and (half == 0 or S == 0):
                vq = dma_ops(next_dma) + vq; next_dma += 1
            slots = {}
            for q in range(len(vq)):
                slots.setdefault(1 + (q * 16) // len(vq), []).append(vq[q])
            vsched = sorted(slots.items())
            n = vm.need({("H", kk)})
            if n is not None: a.e(f"s_waitcnt vmcnt({n})")
            mf = 0
            for j in range(9):
                if kk + 1 < NK: rd(kk + 1, j)
                n = lg.need({(kk, j)})
                if n is not None: a.e(f"s_waitcnt lgkmcnt({n})")
                for rt in range(2):
                    c = "0" if kk == 0 else vr(acc(rt, j), 4)
                    a.e(f"v_mfma_f32_16x16x32_bf16 {vr(acc(rt,j),4)}, {vr(wF(kk&1,j),4)}, {vr(hF(kk%HD,rt),4)}, {c}")
                    mf += 1
                    while vsched and vsched[0][0] <= mf:
                        for op in vsched.pop(0)[1]: emit_op(op)
            assert not vsched
    else:
        HD = 4
        def adv(r):
            return [f"s_add_u32 s{r}, s{r}, 1", f"s_cmp_eq_u32 s{r}, 18", f"s_cselect_b32 s{r}, 0, s{r}"]
        def dma_ops(slot_sreg, slot_off, tag):
            ops = []
            for i in range(5):
                L = []
                if i == 0:
                    L += [f"s_mul_i32 s57, s60, {64*1152}", "s_add_u32 s49, s48, s57"] + adv(60)
                if i == 4: L.append("s_mov_b32 exec_hi, 0")
                L += [f"s_add_u32 m0, s{slot_sreg}, {slot_off + i*1024}", "s_nop 0",
                      f"buffer_load_dwordx4 v{vDma[i]}, s[12:15], s49 offen lds"]
                if i == 4: L.append("s_mov_b32 exec_hi, -1")
                ops.append((tag, L))
            return ops
        def hload_ops(q, tag):
            ops = []
            for rt in range(2):
                L = []
                if rt == 0 and (q & 1) == 0:
                    L += ["s_lshl_b32 s56, s61, 11", "s_add_u32 s56, s56, s41"] + adv(61)
                L += [f"s_add_u32 s50, s56, {(rt*144+(q&1))*1024}",
                      f"buffer_load_dwordx4 {vr(hF(q, rt),4)}, v{vL16}, s[8:11], s50 offen"]
                ops.append((tag, L))
            return ops
        a.e("s_mov_b32 s60, s58")
        a.e("s_mov_b32 s61, s58")
        a.e("s_mov_b32 s62, s47")
        a.e(f"s_add_u32 s63, s47, {2*K2_STAGE}")
        a.e("s_mov_b32 s64, 0")
        for rt in range(2):
            for j in range(9):
                for e in range(4): a.e(f"v_mov_b32 v{acc(rt,j)+e}, 0")
        def run(sim, it, emit):
            vmq, lgq, waits = sim
            E = (lambda x: a.e(x)) if emit else (lambda x: None)
            def eop(op):
                for x in op[1]: E(x)
                vmq.issue(op[0])
            def wait(kind, q, tags, key):
                n = q.need(tags)
                if emit:
                    m = waits.get(key)
                    if m is not None: E(f"s_waitcnt {kind}({m})")
                else:
                    if n is not None: waits[key] = n if waits.get(key) is None else min(waits[key], n)
                    else: waits.setdefault(key, None)
            def rd(q, j):
                vb = vLds[0] if q < 4 else vLds[1]
                qq = q & 3
                base = (qq >> 1) * K2_STAGE + (qq & 1) * 32 * 288 + j * 32
                w = wF(q & 1, j)
                E(f"ds_read_b64_tr_b16 {vr(w,2)}, v{vb} offset:{base}")
                E(f"ds_read_b64_tr_b16 {vr(w+2,2)}, v{vb} offset:{base+8*288}")
                lgq.issue((it * 4 + q, j)); lgq.issue((it * 4 + q, j))
            for q in range(4):
                S = 2 * it + (q >> 1); kk = 4 * it + q
                if (q & 1) == 0:
                    wait("vmcnt", vmq, {("D", S), ("D", S + 1)}, ("bar", q))
                    E("s_barrier")
                vq = []
                if (q & 1) == 0:
                    vq += dma_ops(63, K2_STAGE, ("D", S + 3)) if q == 0 else dma_ops(62, 0, ("D", S + 3))
                vq += hload_ops((q + 3) & 3, ("H", kk + 3))
                slots = {}
                for z in range(len(vq)):
                    slots.setdefault(1 + (z * 16) // len(vq), []).append(vq[z])
                vs = sorted(slots.items())
                wait("vmcnt", vmq, {("H", kk)}, ("h", q))
                mf = 0
                for j in range(9):
                    rd(q + 1, j)
                    wait("lgkmcnt", lgq, {(kk, j)}, ("l", q, j))
                    for rt in range(2):
                        E(f"v_mfma_f32_16x16x32_bf16 {vr(acc(rt,j),4)}, {vr(wF(q&1,j),4)}, {vr(hF(q,rt),4)}, {vr(acc(rt,j),4)}")
                        mf += 1
                        while vs and vs[0][0] <= mf:
                            for op in vs.pop(0)[1]: eop(op)
        def prologue(vmq, lgq, emit):
            E = (lambda x: a.e(x)) if emit else (lambda x: None)
            seq = dma_ops(62, 0, ("D", 0)) + hload_ops(0, ("H", 0)) + hload_ops(1, ("H", 1)) + dma_ops(62, K2_STAGE, ("D", 1)) + hload_ops(2, ("H", 2)) + dma_ops(63, 0, ("D", 2))
            for op in seq:
                for x in op[1]: E(x)
                vmq.issue(op[0])
            n = vmq.need({("D", 0)})
            E(f"s_waitcnt vmcnt({n})")
            E("s_barrier")
            for j in range(9):
                w = wF(0, j)
                E(f"ds_read_b64_tr_b16 {vr(w,2)}, v{vLds[0]} offset:{j*32}")
                E(f"ds_read_b64_tr_b16 {vr(w+2,2)}, v{vLds[0]} offset:{j*32+8*288}")
                lgq.issue((0, j)); lgq.issue((0, j))
        waits = {}
        vq_, lq_ = Cnt("vm", 63), Cnt("lgkm", 15)
        prologue(vq_, lq_, False)
        for it in range(4): run((vq_, lq_, waits), it, False)
        vq_, lq_ = Cnt("vm", 63), Cnt("lgkm", 15)
        prologue(vq_, lq_, True)
        a.lab("K2_LOOP")
        run((vq_, lq_, waits), 0, True)
        a.e(f"v_swap_b32 v{vLds[0]}, v{vLds[1]}")
        a.e("s_mov_b32 s59, s62")
        a.e("s_mov_b32 s62, s63")
        a.e("s_mov_b32 s63, s59")
        a.e("s_add_u32 s64, s64, 1")
        a.e("s_cmp_eq_u32 s64, 8")
        a.e("s_cselect_b32 s14, 0, s14")
        a.e("s_cmp_lt_u32 s64, 9")
        a.e("s_cbranch_scc1 K2_LOOP")
    st(lg)
    a.e("s_nop 7")
    a.e("s_nop 1")
    for rt in range(2):
        for j in range(9):
            a.e(f"s_add_u32 s50, s43, {(rt*36+j)*1024}")
            a.e(f"buffer_store_dwordx4 {vr(acc(rt,j),4)}, v{vL16}, s[16:19], s50 offen")
    st.dump()
    a.e("s_endpgm")

    a.lab("K2_SCAN")
    a.e("s_waitcnt lgkmcnt(0)")
    srd_ws(a, 8, 30, OFF_U, 2048 * 4608)
    srd_ws(a, 12, 30, OFF_HS, 2048 * 2304)
    srd(a, 16, 52, 53, 1152)
    srd(a, 20, 54, 55, 1152)
    srd(a, 24, 56, 57, 1152)
    a.e("s_lshr_b32 s33, s2, 1")
    a.e("s_and_b32 s39, s2, 1")
    if 'prio' in ABL: a.e("s_setprio 3")
    a.e("v_and_b32 v1, 63, v0")
    a.e("v_bfe_u32 v2, v1, 4, 1")
    a.e("v_and_b32 v3, 15, v1")
    a.e("v_lshrrev_b32 v19, 5, v1")
    a.e("s_lshl_b32 s34, s2, 3")
    a.e("v_lshl_add_u32 v4, v2, 2, s34")
    a.e("buffer_load_dword v5, v4, s[16:19], 0 offen")
    a.e("buffer_load_dword v6, v4, s[20:23], 0 offen")
    a.e("buffer_load_dword v7, v4, s[24:27], 0 offen")
    a.e("s_lshl_b32 s35, s39, 9")
    a.e(f"s_mov_b32 s36, {16*73728}")
    a.e("v_mul_lo_u32 v8, v19, s36")
    a.e("v_lshl_add_u32 v8, v3, 4, v8")
    a.e("v_lshl_add_u32 v8, v2, 8, v8")
    a.e("v_add_u32 v8, s35, v8")
    a.e("s_mul_i32 s34, s32, 32*72")
    a.e("s_add_u32 s34, s34, s33")
    a.e("s_lshl_b32 s34, s34, 10")
    NS = 16
    for s in range(NS):
        a.e(f"buffer_load_dwordx4 {vr(128+4*s,4)}, v8, s[8:11], s34 offen")
        a.e(f"s_add_u32 s34, s34, {72*1024}")
    a.e("s_and_b32 s35, s2, 3")
    a.e("s_lshl_b32 s35, s35, 8")
    a.e(f"s_mov_b32 s36, {16*36864}")
    a.e("v_mul_lo_u32 v9, v19, s36")
    a.e("v_lshl_add_u32 v9, v3, 4, v9")
    a.e("v_lshl_add_u32 v9, v2, 3, v9")
    a.e("v_add_u32 v9, s35, v9")
    a.e("s_mul_i32 s35, s32, 32*36")
    a.e("s_lshr_b32 s36, s33, 1")
    a.e("s_add_u32 s35, s35, s36")
    a.e("s_lshl_b32 s35, s35, 10")
    a.e("s_mov_b32 s37, 0xffff0000")
    a.e(f"s_waitcnt vmcnt({NS})")
    for c in range(2):
        b = 20 + 8 * c
        if c == 0:
            a.e("v_lshlrev_b32 v11, 16, v5"); a.e("v_lshlrev_b32 v12, 16, v6"); a.e("v_lshlrev_b32 v13, 16, v7")
        else:
            a.e("v_and_b32 v11, s37, v5"); a.e("v_and_b32 v12, s37, v6"); a.e("v_and_b32 v13, s37, v7")
        a.e(f"v_mul_f32 v13, {f32(LOG2E)}, v13")
        a.e("v_exp_f32 v13, v13")
        a.e("s_nop 0")
        a.e("v_cvt_pk_bf16_f32 v13, v13, v13")
        a.e("v_lshlrev_b32 v13, 16, v13")
        a.e("v_mul_f32 v14, v13, v11")
        a.e("v_mul_f32 v15, v13, v12")
        a.e(f"v_mul_f32 v14, {f32(LOG2E)}, v14")
        a.e("v_exp_f32 v14, v14")
        a.e("v_mul_f32 v15, 0.15915494, v15")
        a.e("v_fract_f32 v15, v15")
        a.e("v_sin_f32 v16, v15")
        a.e("v_cos_f32 v17, v15")
        a.e("s_nop 0")
        a.e(f"v_mul_f32 v{b}, v14, v17")
        a.e(f"v_mul_f32 v{b+1}, v14, v16")
        a.e(f"v_add_f32 v16, -1.0, v{b}")
        a.e("v_mul_f32 v17, v11, v11")
        a.e("v_fma_f32 v17, v12, v12, v17")
        a.e("v_rcp_f32 v18, v17")
        a.e(f"v_mul_f32 v{b+2}, v16, v11")
        a.e(f"v_fma_f32 v{b+2}, v{b+1}, v12, v{b+2}")
        a.e(f"v_mul_f32 v{b+3}, v{b+1}, v11")
        a.e(f"v_fma_f32 v{b+3}, -v16, v12, v{b+3}")
        a.e("v_add_f32 v18, v18, v18")
        a.e(f"v_mul_f32 v{b+2}, v{b+2}, v18")
        a.e(f"v_mul_f32 v{b+3}, v{b+3}, v18")
        a.e(f"v_mov_b32 v{b+4}, v{b}")
        a.e(f"v_mov_b32 v{b+5}, v{b+1}")
        for i in range(4):
            cmul(a, b+4, b+5, b+4, b+5, b+4, b+5, 16)
    for r in range(36, 40): a.e(f"v_mov_b32 v{r}, 0")
    def step(c, s, hr):
        b = 20 + 8 * c
        u = 128 + 4*s + 2*c
        t = 40 + 2 * c
        a.e(f"v_pk_fma_f32 {vr(t,2)}, {vr(b,2)}, {vr(hr,2)}, {vr(u,2)} op_sel:[0,0,0] op_sel_hi:[0,1,1]")
        a.e(f"v_pk_fma_f32 {vr(hr,2)}, {vr(b,2)}, {vr(hr,2)}, {vr(t,2)} op_sel:[1,1,0] op_sel_hi:[1,0,1] neg_lo:[1,0,0]")
    def cfma(d, m, x, y, t):
        a.e(f"v_pk_fma_f32 {vr(t,2)}, {vr(m,2)}, {vr(x,2)}, {vr(y,2)} op_sel:[0,0,0] op_sel_hi:[0,1,1]")
        a.e(f"v_pk_fma_f32 {vr(d,2)}, {vr(m,2)}, {vr(x,2)}, {vr(t,2)} op_sel:[1,1,0] op_sel_hi:[1,0,1] neg_lo:[1,0,0]")
    for s in range(NS):
        a.e(f"s_waitcnt vmcnt({NS-1-s})")
        step(0, s, 36); step(1, s, 38)
    a.e("v_xor_b32 v62, 32, v1")
    a.e("v_lshlrev_b32 v62, 2, v62")
    for r in range(4): a.e(f"ds_bpermute_b32 v{88+r}, v62, v{36+r}")
    a.e("v_cmp_ne_u32 vcc, 0, v19")
    a.e("s_waitcnt lgkmcnt(0)")
    for r in range(4):
        a.e(f"v_cndmask_b32 v{92+r}, v{36+r}, v{88+r}, vcc")
        a.e(f"v_cndmask_b32 v{96+r}, v{88+r}, v{36+r}, vcc")
    for c in range(2):
        cfma(36 + 2*c, 24 + 8*c, 92 + 2*c, 96 + 2*c, 58)
    for c in range(2):
        a.e(f"v_mov_b32 v{46+2*c}, v{24+8*c}")
        a.e(f"v_mov_b32 v{47+2*c}, v{25+8*c}")
        cmul(a, 46+2*c, 47+2*c, 46+2*c, 47+2*c, 46+2*c, 47+2*c, 60)
        a.e(f"v_mov_b32 v{50+2*c}, 1.0")
        a.e(f"v_mov_b32 v{51+2*c}, 0")
    a.e("v_mov_b32 v100, 0")
    a.e("v_mov_b32 v101, 0")
    for d in (1, 2, 4, 8):
        for r in range(4): a.e(f"v_mov_b32 v{54+r}, 0")
        a.e("s_nop 1")
        for r in range(4):
            a.e(f"v_mov_b32_dpp v{54+r}, v{36+r} row_shr:{d} row_mask:0xf bank_mask:0xf")
        a.e(f"v_and_b32 v62, {d}, v3")
        a.e("v_cmp_ne_u32 s[42:43], 0, v62")
        for c in range(2):
            cfma(36 + 2*c, 46 + 2*c, 54 + 2*c, 36 + 2*c, 58)
            cfma(60, 46 + 2*c, 50 + 2*c, 100, 58)
            a.e(f"v_cndmask_b32 v{50+2*c}, v{50+2*c}, v60, s[42:43]")
            a.e(f"v_cndmask_b32 v{51+2*c}, v{51+2*c}, v61, s[42:43]")
            cfma(46 + 2*c, 46 + 2*c, 46 + 2*c, 100, 58)
    a.e("v_cmp_eq_u32 s[40:41], 15, v3")
    a.e("s_nop 3")
    a.e("s_mov_b32 s41, 0")
    a.e("s_lshl_b32 s38, s32, 5")
    a.e("v_lshl_add_u32 v62, v2, 4, s38")
    a.e("s_and_saveexec_b64 s[44:45], s[40:41]")
    a.e("ds_write_b128 v62, v[36:39]")
    a.e("s_mov_b64 exec, s[44:45]")
    for r in range(4): a.e(f"v_mov_b32 v{54+r}, 0")
    a.e("s_nop 1")
    for r in range(4):
        a.e(f"v_mov_b32_dpp v{54+r}, v{36+r} row_shr:1 row_mask:0xf bank_mask:0xf")
    a.e("s_waitcnt lgkmcnt(0)")
    a.e("s_barrier")
    a.e("v_lshlrev_b32 v62, 4, v2")
    for q in range(3):
        a.e(f"ds_read_b128 {vr(64+4*q,4)}, v62 offset:{q*32}")
    for r in range(4): a.e(f"v_mov_b32 v{36+r}, 0")
    a.e("s_waitcnt lgkmcnt(0)")
    for q in range(3):
        a.e(f"s_cmp_le_u32 s32, {q}")
        a.e(f"s_cbranch_scc1 K2_CDONE")
        for c in range(2):
            cfma(36 + 2*c, 46 + 2*c, 36 + 2*c, 64 + 4*q + 2*c, 58)
    a.lab("K2_CDONE")
    for c in range(2):
        cfma(36 + 2*c, 50 + 2*c, 36 + 2*c, 54 + 2*c, 58)
        cfma(60, 24 + 8*c, 36 + 2*c, 92 + 2*c, 58)
        a.e(f"v_cndmask_b32 v{36+2*c}, v{36+2*c}, v60, vcc")
        a.e(f"v_cndmask_b32 v{37+2*c}, v{37+2*c}, v61, vcc")
    for s in range(NS):
        o = 76 + 2 * (s & 3)
        for c in range(2):
            hr = 36 + 2*c
            b = 20 + 8 * c
            step(c, s, hr)
            t = 84 + 2 * c
            a.e(f"v_pk_mul_f32 {vr(t,2)}, {vr(b+2,2)}, {vr(hr,2)} op_sel:[0,0] op_sel_hi:[0,1] neg_hi:[1,0]")
            a.e(f"v_pk_fma_f32 {vr(t,2)}, {vr(b+2,2)}, {vr(hr,2)}, {vr(t,2)} op_sel:[1,1,0] op_sel_hi:[1,0,1] neg_lo:[1,0,0] neg_hi:[1,0,0]")
            a.e(f"v_cvt_pk_bf16_f32 v{o+c}, v{t}, v{t+1}")
        a.e(f"buffer_store_dwordx2 {vr(o,2)}, v9, s[12:15], s35 offen")
        a.e(f"s_add_u32 s35, s35, {36*1024}")
    a.lab("K2_END")
    a.e("s_endpgm")

def gen_k3(a):
    kernel_head(a, "k3_kernel")
    st = Stamper(a, 'stamp3', first=80)
    a.e("s_cmp_ge_u32 s2, 256")
    a.e("s_cbranch_scc1 K3_END2")
    st()
    a.e("s_load_dwordx2 s[4:5], s[0:1], 0")
    a.e("s_load_dwordx2 s[6:7], s[0:1], 64")
    a.e("s_load_dwordx2 s[28:29], s[0:1], 104")
    a.e("s_load_dwordx2 s[30:31], s[0:1], 120")
    acc = lambda rt, j: 184 + (rt * 9 + j) * 4
    D = 3
    cF = lambda slot, j: 40 + (slot * 11 + j) * 4
    hF = lambda slot, rt: 40 + (slot * 11 + 9 + rt) * 4
    a.e("v_lshrrev_b32 v12, 6, v0")
    a.e("s_nop 0")
    a.e("v_readfirstlane_b32 s32, v12")
    if 'k3oldmap' in ABL:
        a.e("s_and_b32 s37, s2, 3")
        a.e("s_lshr_b32 s36, s2, 2")
    else:
        a.e("s_lshr_b32 s36, s2, 3")
        a.e("s_and_b32 s37, s36, 3")
        a.e("s_lshr_b32 s36, s36, 2")
        a.e("s_and_b32 s38, s2, 7")
        a.e("s_lshl_b32 s38, s38, 3")
        a.e("s_add_u32 s36, s36, s38")
    a.e("s_waitcnt lgkmcnt(0)")
    srd_ws(a, 8, 30, OFF_HS, 2048 * 2304)
    srd_ws(a, 12, 30, OFF_CI, 576 * 2304)
    srd_ws(a, 16, 30, OFF_PART, 4 * 2048 * 2304)
    srd(a, 20, 4, 5, 2048 * 1152)
    srd_ws(a, 24, 30, OFF_XN, 2048 * 1152)
    srd(a, 44, 6, 7, 1152)
    srd(a, 48, 28, 29, 2048 * 2304)
    a.e("v_and_b32 v12, 63, v0")
    a.e("v_lshrrev_b32 v13, 4, v12")
    a.e("v_and_b32 v14, 15, v12")
    a.e("v_lshlrev_b32 v4, 4, v12")
    a.e("s_lshl_b32 s39, s36, 1")
    a.e("s_mul_i32 s40, s39, 36")
    a.e("s_mul_i32 s41, s32, 9")
    a.e("s_add_u32 s40, s40, s41")
    a.e("s_lshl_b32 s40, s40, 10")
    a.e("s_mul_i32 s42, s37, 9*36")
    a.e("s_add_u32 s42, s42, s41")
    a.e("s_lshl_b32 s42, s42, 10")
    a.e("s_lshr_b32 s52, s2, 3")
    if 'k3oldmap' not in ABL:
        a.e("s_lshr_b32 s52, s2, 5")
        a.e("s_lshl_b32 s53, s37, 1")
        a.e("s_add_u32 s52, s52, s53")
    a.e("s_mul_i32 s53, s52, 57")
    a.e("s_lshr_b32 s53, s53, 9")
    a.e("s_mul_i32 s53, s53, 9")
    a.e("s_sub_u32 s52, s52, s53")
    for ks in range(9):
        a.e(f"s_add_u32 s53, s52, {ks}")
        a.e("s_cmp_ge_u32 s53, 9")
        a.e("s_cselect_b32 s54, 9, 0")
        a.e("s_sub_u32 s53, s53, s54")
        a.e(f"s_lshl_b32 s{60+ks}, s53, 10")
    vm = Cnt("vm", 63)
    def ld(ks):
        a.e(f"s_add_u32 s55, s42, s{60+ks}")
        a.e(f"s_add_u32 s56, s40, s{60+ks}")
        for j in range(9):
            a.e(f"s_add_u32 s43, s55, {(j*36)*1024}")
            a.e(f"buffer_load_dwordx4 {vr(cF(ks%D,j),4)}, v4, s[12:15], s43 offen")
            vm.issue(("C", ks, j))
            if j == 0:
                for rt in range(2):
                    a.e(f"s_add_u32 s43, s56, {(rt*36)*1024}")
                    a.e(f"buffer_load_dwordx4 {vr(hF(ks%D,rt),4)}, v4, s[8:11], s43 offen")
                    vm.issue(("H", ks))
    for ks in range(D): ld(ks)
    a.e("s_mov_b32 s53, 0xffff0000")
    a.e("s_lshr_b32 s54, s39, 5")
    a.e("s_lshl_b32 s54, s54, 9")
    a.e("s_and_b32 s55, s39, 31")
    a.e("s_add_u32 s54, s54, s55")
    a.e("v_lshl_add_u32 v15, v14, 5, s54")
    a.e("v_mul_u32_u24 v6, 0x900, v15")
    a.e("v_lshl_add_u32 v6, v13, 4, v6")
    a.e("s_mul_i32 s54, s37, 576")
    a.e("v_add_u32 v6, s54, v6")
    a.e("v_lshrrev_b32 v7, 1, v6")
    a.e("s_mul_i32 s55, s37, 288")
    a.e("v_lshlrev_b32 v8, 3, v13")
    a.e("v_add_u32 v8, s55, v8")
    XNOFF(a)
    a.e("s_mul_i32 s55, s39, 36")
    a.e("s_mul_i32 s56, s37, 9")
    a.e("s_add_u32 s55, s55, s56")
    a.e("s_lshl_b32 s70, s55, 10")
    for i in range(5):
        b = 72 + 4 * i if i < 5 else None
    def tile_scalars(i):
        a.e(f"s_add_u32 s57, s32, {4*i}")
        a.e("s_min_u32 s57, s57, 17")
        a.e("s_cmp_ge_u32 s57, 9")
        a.e("s_cselect_b32 s58, 9, 0")
        a.e("s_cselect_b32 s59, 1, 0")
        a.e("s_sub_u32 s58, s57, s58")
        a.e(f"s_mul_i32 s{72+i}, s59, 2304")
        a.e("s_lshl_b32 s34, s58, 6")
        a.e(f"s_add_u32 s{72+i}, s{72+i}, s34")
        a.e(f"s_lshr_b32 s34, s{72+i}, 1")
        a.e("s_lshl_b32 s35, s58, 5")
        XNSOFF(a)
        a.e("s_mul_i32 s41, s59, 36")
        a.e("s_add_u32 s41, s41, s58")
        a.e("s_lshl_b32 s41, s41, 10")
        a.e("s_add_u32 s41, s41, s70")
    eR = lambda i: 40 + 22 * i
    eR = lambda i: 40 + 24 * i
    def eload(i):
        tile_scalars(i)
        b = eR(i)
        for k in range(4):
            a.e(f"s_add_u32 s43, s41, {k*2048*2304}")
            a.e(f"buffer_load_dwordx4 {vr(b+4*k,4)}, v4, s[16:19], s43 offen"); vm.issue(("E", i))
        a.e(f"buffer_load_dwordx2 {vr(b+16,2)}, v7, s[20:23], s34 offen"); vm.issue(("E", i))
        a.e(f"buffer_load_dwordx2 {vr(b+18,2)}, v11, s[24:27], s38 offen"); vm.issue(("E", i))
        a.e(f"buffer_load_dwordx2 {vr(b+20,2)}, v8, s[44:47], s35 offen"); vm.issue(("E", i))
    for ks in range(9):
        for j in range(9):
            n = vm.need({("C", ks, j), ("H", ks)})
            if n is not None: a.e(f"s_waitcnt vmcnt({n})")
            for rt in range(2):
                c = "0" if ks == 0 else vr(acc(rt, j), 4)
                a.e(f"v_mfma_f32_16x16x32_bf16 {vr(acc(rt,j),4)}, {vr(cF(ks%D,j),4)}, {vr(hF(ks%D,rt),4)}, {c}")
        if ks + D < 9: ld(ks + D)
        if ks == 6: eload(0)
        if ks == 7: eload(1); eload(2)
        if ks == 8: eload(3); eload(4)
    st()
    a.e("s_nop 7")
    a.e("s_nop 1")
    a.e("s_mul_i32 s52, s32, 18432")
    a.e("v_add_u32 v5, s52, v4")
    for t in range(18):
        rt, j = divmod(t, 9)
        a.e(f"ds_write_b128 v5, {vr(acc(rt,j),4)} offset:{t*1024}")
    a.e("s_lshl_b32 s56, s32, 10")
    a.e("v_add_u32 v9, s56, v4")
    a.e("v_add_u32 v10, 36864, v9")
    a.e("s_waitcnt lgkmcnt(0)")
    a.e("s_barrier")
    for i in range(5):
        if i == 4:
            a.e("s_cmp_ge_u32 s32, 2")
            a.e(f"s_cbranch_scc1 K3_END")
        b = eR(i); L = 184 + 16 * (i & 3)
        for w in range(4):
            a.e(f"ds_read_b128 {vr(L+4*w,4)}, v{9+(w>>1)} offset:{(w&1)*18432 + i*4096}")
        n = vm.need({("E", i)})
        if n is not None: a.e(f"s_waitcnt vmcnt({n})")
        for e in range(4):
            a.e(f"v_add_f32 v{b+e}, v{b+e}, v{b+4+e}")
            a.e(f"v_add_f32 v{b+8+e}, v{b+8+e}, v{b+12+e}")
            a.e(f"v_add_f32 v{b+e}, v{b+e}, v{b+8+e}")
        a.e(f"v_cvt_pk_bf16_f32 v{b+4}, v{b}, v{b+1}")
        a.e(f"v_cvt_pk_bf16_f32 v{b+5}, v{b+2}, v{b+3}")
        for h in range(2):
            if 'noround' not in ABL:
                a.e(f"v_lshlrev_b32 v{b+2*h}, 16, v{b+4+h}")
                a.e(f"v_and_b32 v{b+1+2*h}, s53, v{b+4+h}")
            a.e(f"v_lshlrev_b32 v{20+2*h}, 16, v{b+16+h}")
            a.e(f"v_and_b32 v{21+2*h}, s53, v{b+16+h}")
            a.e(f"v_lshlrev_b32 v{24+2*h}, 16, v{b+18+h}")
            a.e(f"v_and_b32 v{25+2*h}, s53, v{b+18+h}")
            a.e(f"v_lshlrev_b32 v{28+2*h}, 16, v{b+20+h}")
            a.e(f"v_and_b32 v{29+2*h}, s53, v{b+20+h}")
        for e in range(4):
            a.e(f"v_mul_f32 v{24+e}, v{24+e}, v{28+e}")
        a.e("v_cvt_pk_bf16_f32 v32, v24, v25")
        a.e("v_cvt_pk_bf16_f32 v33, v26, v27")
        for h in range(2):
            a.e(f"v_lshlrev_b32 v{24+2*h}, 16, v{32+h}")
            a.e(f"v_and_b32 v{25+2*h}, s53, v{32+h}")
        a.e("s_waitcnt lgkmcnt(0)")
        for e in range(4):
            a.e(f"v_add_f32 v{L+e}, v{L+e}, v{L+4+e}")
            a.e(f"v_add_f32 v{L+8+e}, v{L+8+e}, v{L+12+e}")
            a.e(f"v_add_f32 v{L+e}, v{L+e}, v{L+8+e}")
            a.e(f"v_add_f32 v{L+e}, v{L+e}, v{24+e}")
            a.e(f"v_add_f32 v{L+e}, v{20+e}, v{L+e}")
            a.e(f"v_add_f32 v{b+8+e}, v{L+e}, v{b+e}")
        a.e(f"buffer_store_dwordx4 {vr(b+8,4)}, v6, s[48:51], s{72+i} offen")
    a.lab("K3_END")
    st.dump()
    a.lab("K3_END2")
    a.e("s_endpgm")

def XNOFF(a):
    if not M32:
        a.e("s_mul_i32 s55, s39, 18432")
        a.e("s_mul_i32 s56, s37, 4608")
        a.e("s_add_u32 s55, s55, s56")
        a.e("v_lshrrev_b32 v16, 1, v13")
        a.e("v_lshlrev_b32 v16, 8, v16")
        a.e("v_lshl_add_u32 v16, v14, 4, v16")
        a.e("v_and_b32 v17, 1, v13")
        a.e("v_lshl_add_u32 v16, v17, 3, v16")
        a.e("v_add_u32 v11, s55, v16")
        return
    a.e("s_mul_i32 s55, s36, 36864")
    a.e("s_mul_i32 s56, s37, 9216")
    a.e("s_add_u32 s55, s55, s56")
    a.e("v_lshrrev_b32 v16, 1, v13")
    a.e("v_lshlrev_b32 v16, 9, v16")
    a.e("v_lshl_add_u32 v16, v14, 4, v16")
    a.e("v_and_b32 v17, 1, v13")
    a.e("v_lshl_add_u32 v16, v17, 3, v16")
    a.e("v_add_u32 v11, s55, v16")
def XNSOFF(a):
    if not M32:
        a.e("s_mul_i32 s38, s59, 18432")
        a.e("s_lshl_b32 s41, s58, 9")
        a.e("s_add_u32 s38, s38, s41")
        return
    a.e("s_lshl_b32 s38, s59, 8")
    a.e("s_lshl_b32 s41, s58, 10")
    a.e("s_add_u32 s38, s38, s41")

def gen(a):
    gen_k2(a)
    gen_k3(a)
    return [kd("k2_kernel", 256, 102), kd("k3_kernel", 256, 102)]
```
